```python
import torch

def _softmax(x, axis=-1):
    return torch.softmax(x, dim=axis)

def _gelu(x):
    return torch.nn.functional.gelu(x, approximate='tanh')

def _silu(x):
    return torch.nn.functional.silu(x)

def _sigmoid(x):
    return torch.sigmoid(x)

def _layernorm(x, axis=-1, eps=1e-05):
    m = x.mean(dim=axis, keepdim=True)
    v = x.var(dim=axis, keepdim=True, unbiased=False)
    return (x - m) / torch.sqrt(v + eps)

def _scatter_add(tgt, idx, src, axis=0):
    return tgt.clone().index_add_(axis, idx, src)

def _segment_sum(src, seg, n):
    out = torch.zeros((n,) + src.shape[1:], dtype=src.dtype)
    return out.index_add_(0, seg, src)

def _pad(x, pw):
    flat = tuple((v for pair in reversed(pw) for v in pair))
    return torch.nn.functional.pad(x, flat)
kernel_name = 'standalone__tree_speculative_verify_tree_attention_over_candidate_token_tree__decode'

def setup_inputs():

    _w = lambda a: (lambda t: t.to(torch.bfloat16) if t.is_floating_point() else t)(torch.as_tensor(a))
    B, Hq, Hkv, T, C, D = (1, 32, 8, 1, 32768, 128)
    tree_mask = torch.zeros((B, T, T), dtype=float)
    for b in range(B):
        parent = torch.zeros(T, dtype=torch.int64)
        for i in range(1, T):
            parent[i] = int(torch.randint(0, i, (1,)).item())
        for i in range(T):
            j = i
            tree_mask[b, i, j] = 1.0
            while j > 0:
                j = parent[j]
                tree_mask[b, i, j] = 1.0
    return {'q': _w((lambda *s: torch.randn(*s, dtype=torch.bfloat16) * 0.8)(B, Hq, T, D)), 'k_cache': _w((lambda *s: torch.randn(*s, dtype=torch.bfloat16) * 0.8)(B, Hkv, C, D)), 'v_cache': _w((lambda *s: torch.randn(*s, dtype=torch.bfloat16) * 0.05)(B, Hkv, C, D)), 'k_tree': _w((lambda *s: torch.randn(*s, dtype=torch.bfloat16) * 0.8)(B, Hkv, T, D)), 'v_tree': _w((lambda *s: torch.randn(*s, dtype=torch.bfloat16) * 0.05)(B, Hkv, T, D)), 'tree_mask': _w(tree_mask)}

def reference(q, k_cache, v_cache, k_tree, v_tree, tree_mask):
    B, Hq, T, D = q.shape
    Hkv, C = (k_cache.shape[1], k_cache.shape[2])
    rep = Hq // Hkv
    kc = (lambda x, n, axis: torch.repeat_interleave(x, n, dim=axis))(k_cache, rep, axis=1)
    vc = (lambda x, n, axis: torch.repeat_interleave(x, n, dim=axis))(v_cache, rep, axis=1)
    kt = (lambda x, n, axis: torch.repeat_interleave(x, n, dim=axis))(k_tree, rep, axis=1)
    vt = (lambda x, n, axis: torch.repeat_interleave(x, n, dim=axis))(v_tree, rep, axis=1)
    k = torch.concatenate([kc, kt], axis=2)
    v = torch.concatenate([vc, vt], axis=2)
    scale = D ** (-0.5)
    scores = torch.einsum('bhqd,bhkd->bhqk', q, k) * scale
    ctx_mask = torch.ones((B, 1, T, C), dtype=scores.dtype)
    tm = tree_mask[:, None, :, :].clone()
    full_mask = torch.concatenate([ctx_mask, tm], axis=-1)
    scores = scores + (1.0 - full_mask) * -1000000000.0
    p = _softmax(scores, axis=-1)
    return torch.einsum('bhqk,bhkd->bhqd', p, v)
```

```python
import re
TRANS = ("v_exp_f32", "v_log_f32", "v_rcp_f32", "v_rsq_f32", "v_sqrt_f32")
def regs(tok):
    tok = tok.strip().lstrip("-")
    m = re.fullmatch(r"([vsa])\[(\d+):(\d+)\]", tok)
    if m: return {(m.group(1), i) for i in range(int(m.group(2)), int(m.group(3)) + 1)}
    m = re.fullmatch(r"([vsa])(\d+)", tok)
    if m: return {(m.group(1), int(m.group(2)))}
    if tok == "vcc": return {("s", "vcc")}
    return set()
def parse(line):
    s = line.split(";")[0].strip()
    if not s or s.endswith(":") or s.startswith("."): return None
    parts = s.split(None, 1)
    op = parts[0]; rest = parts[1] if len(parts) > 1 else ""
    ops = [o.strip() for o in re.split(r",(?![^\[]*\])", rest)] if rest else []
    if ops:
        last = ops[-1].split()
        mods = " ".join(last[1:]) if last else ""
        ops[-1] = last[0] if last else ""
    else: mods = ""
    d = dict(op=op, ops=ops, mods=mods, line=line)
    d["mfma"] = op.startswith("v_mfma")
    d["valu"] = op.startswith("v_") and not d["mfma"]
    d["dpp"] = op.endswith("_dpp")
    d["perm"] = op.startswith("v_permlane")
    d["trans"] = op in TRANS
    d["vmem"] = op.startswith(("global_", "buffer_"))
    d["ds"] = op.startswith("ds_")
    w = set(); r = set(); srcC = set()
    R = [regs(o) for o in ops]
    if d["mfma"]:
        w = R[0]; r = R[1] | R[2]; srcC = R[3]
    elif d["perm"]:
        w = R[0] | R[1]; r = R[0] | R[1]
    elif d["valu"]:
        if op.startswith(("v_add_co", "v_addc_co", "v_sub_co", "v_subb")):
            w = R[0] | R[1]; r = set().union(*R[2:])
        else:
            w = R[0]; r = set().union(*R[1:]) if len(R) > 1 else set()
            if op.startswith(("v_fmac", "v_writelane")) or d["dpp"]: r |= R[0]
    elif d["vmem"]:
        if "load" in op and "lds" not in mods.split(): w = R[0]; r = set().union(*R[1:])
        elif "atomic" in op and "sc0" in mods.split(): w = R[0]; r = set().union(*R[1:])
        else: r = set().union(*R)
        d["widestore"] = ("store" in op and op.endswith(("x3", "x4")))
        if d["widestore"]: d["sdata"] = R[1] if op.startswith("global") else R[0]
    elif d["ds"]:
        if "read" in op or "permute" in op or "swizzle" in op: w = R[0]; r = set().union(*R[1:])
        else: r = set().union(*R)
    d["w"] = w; d["r"] = r; d["c"] = srcC
    return d
def need(p, c):
    n = 0
    cr = c["r"] | c["c"]
    pv = {x for x in p["w"] if x[0] in "va"}; ps = {x for x in p["w"] if x[0] == "s"}
    if p["valu"]:
        if c["mfma"] and pv & cr: n = max(n, 2)
        if (c["dpp"] or c["perm"]) and pv & c["r"]: n = max(n, 2)
        if c["op"].startswith(("v_readfirstlane", "v_readlane")) and pv & c["r"]: n = max(n, 1)
        if p["trans"] and c["valu"] and not c["trans"] and pv & c["r"]: n = max(n, 1)
        if ps & c["r"]:
            if c["valu"]: n = max(n, 4 if c["op"].startswith(("v_readlane", "v_writelane")) else 2)
            if c["vmem"]: n = max(n, 5)
    if p["mfma"]:
        if c["mfma"]:
            if p["w"] & c["r"]: n = max(n, 8)
            if p["w"] & c["c"] and p["w"] != c["c"]: n = max(n, 6)
        elif c["valu"]:
            if p["w"] & (c["r"] | c["w"]): n = max(n, 8)
            if p["c"] & c["w"]: n = max(n, 3)
        elif c["vmem"] or c["ds"]:
            if p["w"] & (c["r"] | c["w"]): n = max(n, 8)
    if p.get("widestore") and c["valu"] and p["sdata"] & c["w"]: n = max(n, 2)
    return n
def fix(text, insert=True, seams=()):
    out = []; hist = []
    ins = 0
    for line in text.split("\n"):
        d = parse(line) if line.startswith("    ") else None
        if d is None:
            out.append(line); continue
        if d["op"] == "s_nop":
            k = int(d["ops"][0]) + 1
            hist = [(p, s + k) for p, s in hist if s + k < 12]
            out.append(line); continue
        short = max([need(p, d) - s for p, s in hist] + [0])
        if short > 0:
            if insert:
                out.append(f"    s_nop {short-1}"); ins += short
                hist = [(p, s + short) for p, s in hist]
            else:
                print("HAZARD", short, line)
        out.append(line)
        hist = [(p, s + 1) for p, s in hist if s + 1 < 12] + [(d, 0)]
        if d["op"] in ("s_branch", "s_endpgm"): hist = []
    return "\n".join(out), ins
if __name__ == "__main__":
    import sys
    fix(open(sys.argv[1]).read(), insert=False)

def check_branches(text):
    lines = text.split("\n")
    labels = {l[:-1]: i for i, l in enumerate(lines) if l.endswith(":") and not l.startswith((" ", ";", "."))}
    probs = []
    def states(d): return int(d["ops"][0]) + 1 if d["op"] == "s_nop" else 1
    def follow(i, hist, depth):
        while i < len(lines) and hist:
            d = parse(lines[i]) if lines[i].startswith("    ") else None
            if d is None:
                i += 1; continue
            if d["op"] != "s_nop":
                short = max([need(p, d) - s for p, s in hist] + [0])
                if short > 0: probs.append((short, i, lines[i]))
            k = states(d)
            hist = [(p, s + k) for p, s in hist if s + k < 12]
            if d["op"].startswith(("s_branch", "s_cbranch")) and depth < 3:
                follow(labels[d["ops"][0]], list(hist), depth + 1)
            if d["op"] in ("s_branch", "s_endpgm"): return
            i += 1
    hist = []
    for i, line in enumerate(lines):
        d = parse(line) if line.startswith("    ") else None
        if d is None: continue
        k = states(d)
        hist = [(p, s + k) for p, s in hist if s + k < 12]
        if d["op"].startswith(("s_branch", "s_cbranch")):
            follow(labels[d["ops"][0]], list(hist), 0)
        if d["op"] != "s_nop": hist.append((d, 0))
        if d["op"] in ("s_branch", "s_endpgm"): hist = []
    return probs
```

```python
import sys, struct, math
sys.path.insert(0, "tools")
import hazard
KN = "standalone__tree_speculative_verify_tree_attention_over_candidate_token_tree__decode"
def f32(x): return "0x%08x" % struct.unpack("<I", struct.pack("<f", x))[0]
SCALE = 128 ** -0.5
CC = SCALE * math.log2(math.e)
BIG = -1e9 / SCALE
HDR = open("cdna_kernels/" + KN + ".s.ref").read().split("; Override launch")[0]

def gen(LA=13, d1="a", KV=4, dloop=1, LP=0, stamps=0, ldflags="nt", spin=1 << 20, force="", hprio=0, pdepth=5,
        msleep=4, lsleep=4, asleep=8, osleep=1, pf=1, thr=8, amp=0, amp2=0, doc=0):
    W = 2; NWG = 256; NT = 128; NTOT = 256; NSLOT = 16; IG = 8; NP = 32
    d1 = [int(x, 36) for x in str(d1)]
    GSTEP = IG * W * 1024; REG = NT * W * 1024
    REC = 1024; MLB = 256 * REC
    MLX, BX, FLAG = 4096, 5120, 5632
    lds = 5648
    L = []
    def e(s): L.append("    " + s)
    def c(s):
        if doc: L.append("    ; " + s)
    def lab(s): L.append(s + ":")
    DPP = " row_mask:0xf bank_mask:0xf"
    vK, vV, vM0, vM1 = 1, 2, 3, 4
    vt = 5; vmx = 6; vnmc = 7; vML = 8; vQ = 10; vA = 14; vD = 22; vT = 38; vX = 42; vLs = 46
    vLW = 48; vLR = 49; vMW = 50; vLane = 51; vt2 = 52; vOut = 53; vSt = 54; vAL = 56
    vP = 58; vR = vP + NP
    nv = vR + 4 * NSLOT
    sWave = 3; sKV = 22; sSplit = 23; sInc = 24; sC = 25; sNC = 26; sCnt = 27; sT = 28; sT2 = 29; sRec = 30; sMT = 31
    sK = 32; s4k = 36; sSt = 40; sOdd = 48; sHi = 50; sFast = 52; sSw = 54
    def stamp(slot):
        if stamps:
            e(f"s_memrealtime s[{sSt}:{sSt+1}]"); e("s_waitcnt lgkmcnt(0)"); e(f"v_writelane_b32 v{vSt}, s{sSt}, {slot}")
    def stamp_async(k):
        if stamps: e(f"s_memrealtime s[{sSt + 2*k}:{sSt + 2*k + 1}]")
    L.append(HDR.rstrip())
    L.append(f"; @launch grid=({NWG},1,1) block=({(W+1)*64},1,1) lds={lds}")
    if doc: L.append(DOC.rstrip())
    L.append('.amdgcn_target "amdgcn-amd-amdhsa--gfx950"')
    L.append(".text"); L.append(f".globl {KN}_kernel"); L.append(".p2align 8"); L.append(f".type {KN}_kernel,@function"); L.append(f"{KN}_kernel:")
    stamp_async(1)
    if amp: e("s_memrealtime s[56:57]")
    c("s[4:5] q  s[6:7] k  s[8:9] v  s[10:11] k_tree  s[12:13] v_tree  s[14:15] mask  s[16:17] out  s[18:19] debug  s[20:21] ws")
    e("s_load_dwordx16 s[4:19], s[0:1], 0")
    e("s_load_dwordx2 s[20:21], s[0:1], 64")
    e(f"s_cmp_ge_u32 s2, {NWG}"); e("s_cbranch_scc1 L_end")
    e(f"v_lshrrev_b32 v{vt}, 6, v0")
    e(f"v_and_b32 v{vLane}, 63, v0")
    e(f"v_readfirstlane_b32 s{sWave}, v{vt}")
    e(f"s_and_b32 s{sKV}, s2, 7"); e(f"s_lshr_b32 s{sSplit}, s2, 3")
    c("K/Q tile lane offset: row ((l>>2)&3)*256 + 16-byte chunk (4*(l>>4) + (l&3))")
    e(f"v_lshrrev_b32 v{vt}, 4, v{vLane}"); e(f"v_lshlrev_b32 v{vt2}, 6, v{vt}")
    e(f"v_and_b32 v{vt}, 3, v{vLane}"); e(f"v_lshl_add_u32 v{vt2}, v{vt}, 4, v{vt2}")
    e(f"v_bfe_u32 v{vK}, v{vLane}, 2, 2"); e(f"v_lshl_add_u32 v{vK}, v{vK}, 8, v{vt2}")
    e(f"s_lshl_b32 s{sT2}, s{sKV}, 10")
    e(f"v_add_u32 v{vmx}, s{sT2}, v{vK}")
    if stamps: e(f"v_mov_b32 v{vSt}, 0")
    e(f"s_cmp_eq_u32 s{sWave}, {W}"); e("s_cbranch_scc1 L_helper")
    c("================ streaming waves ================")
    e(f"s_lshl_b32 s{sT}, s{sKV}, 23"); e(f"s_lshl_b32 s{sT2}, s{sSplit}, 18"); e(f"s_add_u32 s{sT}, s{sT}, s{sT2}")
    e(f"s_lshl_b32 s{sT2}, s{sWave}, 13"); e(f"s_add_u32 s{sT}, s{sT}, s{sT2}")
    e(f"s_mov_b32 s{sK+2}, 0x4000000"); e(f"s_mov_b32 s{sK+3}, 0x20000"); e(f"s_movk_i32 s{s4k}, 0x1000")
    e(f"v_add_u32 v{vK}, s{sT}, v{vK}")
    e(f"v_lshl_add_u32 v{vV}, v{vLane}, 4, s{sT}")
    e("s_waitcnt lgkmcnt(0)")
    stamp_async(2)
    e(f"s_mov_b32 s{sK}, s6"); e(f"s_mov_b32 s{sK+1}, s7")
    st = dict(I=0, C=0, cons=0, kloop=False, deep=False)
    def slot(n): return vR + 4 * (n % NSLOT)
    def issue():
        n = st["I"]; reg = slot(n)
        if n % 16 == 0 and st["kloop"]:
            c("last K iteration (SCC=1): the load stream moves on from K to V")
            e(f"s_cselect_b64 s[{sK}:{sK+1}], s[8:9], s[{sK}:{sK+1}]"); e(f"s_cselect_b64 s[{sSw}:{sSw+1}], -1, 0")
            e(f"v_cndmask_b32 v{vK}, v{vK}, v{vV}, s[{sSw}:{sSw+1}]")
        e(f"buffer_load_dwordx4 v[{reg}:{reg+3}], v{vK}, s[{sK}:{sK+3}], {'s%d' % s4k if n % 8 >= 4 else 0} offen offset:{(n % 4)*1024} {ldflags}")
        if n % IG == IG - 1 and n != NTOT - 1: e(f"v_add_u32 v{vK}, {GSTEP}, v{vK}")
        st["I"] += 1
    def needdata(n):
        if st["C"] < n + 1:
            e(f"s_waitcnt vmcnt({st['I'] - n - 1})"); st["C"] = n + 1
    def gate():
        if st["I"] >= min(NTOT, st["cons"] + NSLOT): return
        if not st["deep"]:
            w = d1[st["I"] % len(d1)]
            if st["C"] < st["I"] - w + 1:
                e(f"s_waitcnt vmcnt({w-1})"); st["C"] = st["I"] - w + 1
            issue()
        else:
            while st["I"] < min(NTOT, st["cons"] + NSLOT): issue()
    e(f"global_load_dwordx4 v[{vQ}:{vQ+3}], v{vmx}, s[4:5]")
    LP = LP or LA
    for n in range(LP): issue()
    e(f"s_mov_b32 s{sC}, {f32(CC)}"); e(f"s_mov_b32 s{sNC}, {f32(-CC)}")
    e(f"s_mov_b32 s{sOdd}, 0xaaaaaaaa"); e(f"s_mov_b32 s{sOdd+1}, 0xaaaaaaaa"); e(f"s_mov_b32 s{sHi}, 0xcccccccc"); e(f"s_mov_b32 s{sHi+1}, 0xcccccccc")
    c("per-lane masks that drop a bf16 weight into k-slot (l&3) of the P operand")
    e(f"v_and_b32 v{vt}, 1, v{vLane}"); e(f"v_lshlrev_b32 v{vt}, 4, v{vt}"); e(f"v_mov_b32 v{vmx}, 0xffff"); e(f"v_lshlrev_b32 v{vt}, v{vt}, v{vmx}")
    e(f"v_bfe_i32 v{vmx}, v{vLane}, 1, 1")
    e(f"v_and_b32 v{vM1}, v{vmx}, v{vt}"); e(f"v_xor_b32 v{vM0}, v{vM1}, v{vt}")
    e(f"v_lshlrev_b32 v{vMW}, 3, v{vLane}")
    e(f"s_lshl_b32 s{sT}, s{sWave}, 11"); e(f"v_add_u32 v{vLW}, s{sT}, v{vMW}")
    e(f"s_lshl_b32 s{sT}, s{sWave}, 10"); e(f"v_add_u32 v{vLR}, s{sT}, v{vMW}")
    e(f"s_lshl_b32 s{sT}, s{sKV}, 5"); e(f"s_add_u32 s{sT}, s{sT}, s{sSplit}"); e(f"s_lshl_b32 s{sT}, s{sT}, 1"); e(f"s_add_u32 s{sT}, s{sT}, s{sWave}")
    e(f"s_lshl_b32 s{sT}, s{sT}, 9"); e(f"v_add_u32 v{vOut}, s{sT}, v{vMW}")
    e(f"s_lshl_b32 s{sT}, s{sWave}, 9"); e(f"v_add_u32 v{vt2}, s{sT}, v{vMW}")
    for r in range(0, 8, 2): e(f"v_mov_b64 v[{vA+r}:{vA+r+1}], 0")
    e(f"v_mov_b32 v{vmx}, 0xff800000"); e(f"s_mov_b32 s{sCnt}, 8")
    e("s_barrier")
    if stamps:
        e(f"s_getreg_b32 s{sT}, hwreg(HW_REG_XCC_ID)"); e(f"s_getreg_b32 s{sT2}, hwreg(HW_REG_HW_ID)")
        e("s_waitcnt lgkmcnt(0)")
        e(f"v_writelane_b32 v{vSt}, s{sT}, 2"); e(f"v_writelane_b32 v{vSt}, s{sT2}, 3")
        e(f"v_writelane_b32 v{vSt}, s{sSt+2}, 0"); e(f"v_writelane_b32 v{vSt}, s{sSt+4}, 1")
    while st["I"] < LA: gate()
    st["C"] = max(0, min(st["C"], LA - max(d1) ))
    def xrow(x, op):
        e(f"v_mov_b32 v{vt}, v{x}")
        e(f"v_permlane32_swap_b32 v{x}, v{vt}"); e(f"{op} v{x}, v{x}, v{vt}")
        e(f"v_mov_b32 v{vt}, v{x}")
        e(f"v_permlane16_swap_b32 v{x}, v{vt}"); e(f"{op} v{x}, v{x}, v{vt}")
    def qk(dst, src): e(f"v_mfma_f32_16x16x32_bf16 v[{dst}:{dst+3}], v[{src}:{src+3}], v[{vQ}:{vQ+3}], 0")
    def rotP(lo, hi):
        for r in range(lo, hi, 2): e(f"v_mov_b64 v[{vP+r}:{vP+r+1}], v[{vP+r+4}:{vP+r+5}]")
    c("---- K phase: 8 iterations x 4 groups x 4 tiles (a tile = 4 positions = one 1 KiB load)")
    st["C"] = 0
    lab("L_kloop")
    e(f"s_cmp_eq_u32 s{sCnt}, 1")
    st["kloop"] = True
    for g in range(4):
        gate()
        needdata(4 * g + 3)
        for t in range(4): qk(vD + 4 * t, slot(4 * g + t))
        st["cons"] = 4 * g + 4
        gate()
        rotP(8 * g, min(8 * g + 8, NP - 4))
        for u in range(4):
            for t in range(4):
                if u == 0: e(f"v_mov_b32_dpp v{vT+t}, v{vD+4*t} quad_perm:[0,0,0,0]{DPP}")
                else: e(f"v_add_f32_dpp v{vT+t}, v{vD+4*t+u}, v{vT+t} quad_perm:[{u},{u},{u},{u}]{DPP}")
            if u == 1: gate()
        e(f"v_cndmask_b32 v{vT}, v{vT}, v{vT+1}, s[{sOdd}:{sOdd+1}]")
        e(f"v_cndmask_b32 v{vT+2}, v{vT+2}, v{vT+3}, s[{sOdd}:{sOdd+1}]")
        dst = [vX, vX + 1, vX + 2, vP + NP - 1][g]
        e(f"v_cndmask_b32 v{dst}, v{vT}, v{vT+2}, s[{sHi}:{sHi+1}]")
        if g == 1: e(f"v_max3_f32 v{vmx}, v{vmx}, v{vX}, v{vX+1}")
        if g == 3:
            e(f"v_max3_f32 v{vmx}, v{vmx}, v{vX+2}, v{vP+NP-1}")
            e(f"v_mov_b64 v[{vP+NP-4}:{vP+NP-3}], v[{vX}:{vX+1}]"); e(f"v_mov_b32 v{vP+NP-2}, v{vX+2}")
        gate()
    st["kloop"] = False
    assert st["I"] == 16 + LA, st
    if stamps == 2:
        e(f"s_memrealtime s[{sSt}:{sSt+1}]"); e(f"s_sub_u32 s{sT}, 12, s{sCnt}"); e("s_waitcnt lgkmcnt(0)")
        e(f"s_mov_b32 m0, s{sT}"); e(f"v_writelane_b32 v{vSt}, s{sSt}, m0")
    e(f"s_sub_u32 s{sCnt}, s{sCnt}, 1"); e(f"s_cmp_lg_u32 s{sCnt}, 0"); e("s_cbranch_scc1 L_kloop")
    for k in ("I", "C", "cons"): st[k] += NT - 16
    c("---- true max of this wave's 512 scores per head")
    e(f"v_max_f32_dpp v{vmx}, v{vmx}, v{vmx} quad_perm:[1,0,3,2]{DPP}")
    e(f"v_max_f32_dpp v{vmx}, v{vmx}, v{vmx} quad_perm:[2,3,0,1]{DPP}")
    gate()
    xrow(vmx, "v_max_f32")
    e(f"v_mul_f32 v{vnmc}, s{sNC}, v{vmx}"); e(f"v_min_u32 v{vML}, -2, v{vmx}")
    gate()
    def softp(g):
        for k in (g, g + 1): e(f"v_fma_f32 v{vP+k}, v{vP+k}, s{sC}, v{vnmc}")
        for k in (g, g + 1): e(f"v_exp_f32 v{vP+k}, v{vP+k}")
        if g == 0: e(f"v_mov_b64 v[{vLs}:{vLs+1}], v[{vP}:{vP+1}]")
        else: e(f"v_pk_add_f32 v[{vLs}:{vLs+1}], v[{vLs}:{vLs+1}], v[{vP+g}:{vP+g+1}]")
        for k in (g, g + 1): e(f"v_cvt_pk_bf16_f32 v{vP+k}, v{vP+k}, v{vP+k}")
    softp(0)
    gate()
    def mkx(t, pbase):
        if t < NT:
            X = vX + 2 * (t % 2); k = t % 4
            e(f"v_and_b32_dpp v{X}, v{vP + t//4 - pbase}, v{vM0} quad_perm:[{k},{k},{k},{k}]{DPP}")
            e(f"v_and_b32_dpp v{X+1}, v{vP + t//4 - pbase}, v{vM1} quad_perm:[{k},{k},{k},{k}]{DPP}")
    def vtile(t, pbase, extra=None):
        needdata(NT + t)
        src = slot(NT + t); X = vX + 2 * (t % 2)
        e(f"v_mfma_f32_16x16x16_bf16 v[{vA}:{vA+3}], v[{src}:{src+1}], v[{X}:{X+1}], v[{vA}:{vA+3}]")
        e(f"v_mfma_f32_16x16x16_bf16 v[{vA+4}:{vA+7}], v[{src+2}:{src+3}], v[{X}:{X+1}], v[{vA+4}:{vA+7}]")
        st["cons"] = NT + t + 1
        gate()
        if extra: extra()
        mkx(t + 2, pbase)
    mkx(0, 0); mkx(1, 0)
    c("---- V phase, first 16 tiles: the remaining exponentials ride along")
    def fin_l():
        e(f"v_add_f32 v{vML+1}, v{vLs}, v{vLs+1}")
        e(f"v_add_f32_dpp v{vML+1}, v{vML+1}, v{vML+1} quad_perm:[1,0,3,2]{DPP}")
        e(f"v_add_f32_dpp v{vML+1}, v{vML+1}, v{vML+1} quad_perm:[2,3,0,1]{DPP}")
        xrow(vML + 1, "v_add_f32")
        e(f"v_min_u32 v{vML+1}, -2, v{vML+1}")
        e(f"ds_write_b64 v{vt2}, v[{vML}:{vML+1}] offset:{MLX}")
        e(f"v_mov_b32 v{vnmc}, 0")
    for t in range(16): vtile(t, 0, (lambda t=t: softp(2 * t + 2)) if t < 15 else fin_l)
    rotP(0, NP - 4)
    e(f"s_mov_b32 s{sCnt}, {KV}")
    LV = st["I"] - st["cons"]; C0 = st["C"] - st["cons"]
    c("---- V phase, steady state")
    lab("L_vloop")
    for t in range(16, 32): vtile(t, 4)
    assert st["I"] - st["cons"] == LV and st["C"] - st["cons"] >= C0
    rotP(0, NP - 8)
    if stamps == 2:
        e(f"s_memrealtime s[{sSt}:{sSt+1}]"); e(f"s_sub_u32 s{sT}, {12+KV}, s{sCnt}"); e("s_waitcnt lgkmcnt(0)")
        e(f"s_mov_b32 m0, s{sT}"); e(f"v_writelane_b32 v{vSt}, s{sSt}, m0")
    e(f"s_sub_u32 s{sCnt}, s{sCnt}, 1"); e(f"s_cmp_lg_u32 s{sCnt}, 0"); e("s_cbranch_scc1 L_vloop")
    for k in ("I", "C", "cons"): st[k] += 16 * (KV - 1)
    c("---- V phase, end: the window opens up to the whole ring")
    st["deep"] = True
    KD = 6 - KV
    if dloop and KD >= 2:
        assert st["I"] - st["cons"] == NSLOT
        e(f"s_mov_b32 s{sCnt}, {KD}")
        st["C"] = st["cons"]
        t0 = 16 * (KV + 1)
        lab("L_dloop")
        for t in range(t0, t0 + 16): vtile(t, 4 * (KV + 1))
        rotP(0, 4 * KD)
        e(f"s_sub_u32 s{sCnt}, s{sCnt}, 1"); e(f"s_cmp_lg_u32 s{sCnt}, 0"); e("s_cbranch_scc1 L_dloop")
        for k in ("I", "C", "cons"): st[k] += 16 * (KD - 1)
        for t in range(NT - 16, NT): vtile(t, NP - 4)
    else:
        for t in range(16 * (KV + 1), NT): vtile(t, 4 * (KV + 1))
    assert st["I"] == NTOT
    stamp_async(1)
    c("---- combine the two waves through LDS and publish this workgroup's partial (bf16)")
    e(f"ds_write2st64_b64 v{vLW}, v[{vA}:{vA+1}], v[{vA+2}:{vA+3}] offset0:0 offset1:1")
    e(f"ds_write2st64_b64 v{vLW}, v[{vA+4}:{vA+5}], v[{vA+6}:{vA+7}] offset0:2 offset1:3")
    e("s_waitcnt lgkmcnt(0)"); e("s_barrier")
    e(f"ds_read_b32 v{vt}, v{vnmc} offset:{FLAG}")
    e(f"ds_read_b64 v[{vX}:{vX+1}], v{vMW} offset:{BX}")
    e(f"ds_read2st64_b64 v[{vD}:{vD+3}], v{vLR} offset0:0 offset1:1")
    e(f"ds_read2st64_b64 v[{vD+4}:{vD+7}], v{vLR} offset0:4 offset1:5")
    stamp_async(2)
    e(f"s_waitcnt lgkmcnt({0 if stamps else 1})")
    e(f"v_readfirstlane_b32 s{sT}, v{vt}")
    e(f"v_pk_mul_f32 v[{vD}:{vD+1}], v[{vD}:{vD+1}], v[{vX}:{vX+1}] op_sel_hi:[1,0]")
    e(f"v_pk_mul_f32 v[{vD+2}:{vD+3}], v[{vD+2}:{vD+3}], v[{vX}:{vX+1}] op_sel_hi:[1,0]")
    e("s_waitcnt lgkmcnt(0)")
    e(f"v_pk_fma_f32 v[{vD}:{vD+1}], v[{vD+4}:{vD+5}], v[{vX}:{vX+1}], v[{vD}:{vD+1}] op_sel:[0,1,0] op_sel_hi:[1,1,1]")
    e(f"v_pk_fma_f32 v[{vD+2}:{vD+3}], v[{vD+6}:{vD+7}], v[{vX}:{vX+1}], v[{vD+2}:{vD+3}] op_sel:[0,1,0] op_sel_hi:[1,1,1]")
    e(f"s_cmp_eq_u32 s{sT}, 0")
    e(f"v_cvt_pk_bf16_f32 v{vD}, v{vD}, v{vD+1}"); e(f"v_cvt_pk_bf16_f32 v{vD+1}, v{vD+2}, v{vD+3}")
    e(f"v_min_u32 v{vD}, -2, v{vD}"); e(f"v_min_u32 v{vD+1}, -2, v{vD+1}")
    ost = f"global_store_dwordx2 v{vOut}, v[{vD}:{vD+1}], s[20:21]"
    e("s_cbranch_scc1 L_slowO")
    e(ost)
    lab("L_sdone")
    if stamps:
        stamp(58)
        e(f"v_writelane_b32 v{vSt}, s{sSt+2}, 56"); e(f"v_writelane_b32 v{vSt}, s{sSt+4}, 57")
        e("s_branch L_fin")
    else: e("s_endpgm")
    lab("L_slowO")
    e(ost + " sc1")
    e("s_waitcnt vmcnt(0)"); e("s_barrier")
    e("s_branch L_sdone" if stamps else "s_endpgm")

    c("================ helper wave ================")
    lab("L_helper")
    hP = vR; hKT = vR + 4; hVT = vR + 8; hMask = vR + 12; hTa = vR + 14; hO = vR + 22; hML = vR + 30; hG = vR + 32; hCnt = vR + 34
    vCO, vCM, vOA = vK, vV, vM0
    if hprio: e(f"s_setprio {hprio}")
    if pf:
        c("read this kernel's own code once (one dword per 128 B) so that instruction fetch finds it in L2")
        e(f"s_getpc_b64 s[{sT}:{sT+1}]")
        lab("L_pfbase")
        e(f"s_sub_u32 s{sT}, s{sT}, L_pfbase-{KN}_kernel"); e(f"s_subb_u32 s{sT+1}, s{sT+1}, 0")
        e(f"v_lshlrev_b32 v{hO}, 7, v{vLane}")
        e(f"v_min_u32 v{hO}, L_codeend-4-{KN}_kernel, v{hO}")
        e(f"v_mov_b32 v{hO+1}, s{sT+1}")
        e(f"v_add_co_u32 v{hO}, vcc, s{sT}, v{hO}")
        e(f"v_addc_co_u32 v{hO+1}, vcc, 0, v{hO+1}, vcc")
        e(f"global_load_dword v{hO+2}, v[{hO}:{hO+1}], off")
    e(f"s_lshl_b32 s{sRec}, s{sKV}, 5"); e(f"s_add_u32 s{sRec}, s{sRec}, s{sSplit}")
    e(f"s_mov_b32 s{sC}, {f32(CC)}"); e(f"s_mov_b32 s{sNC}, {f32(-CC)}")
    e(f"v_lshlrev_b32 v{vA}, 4, v{vLane}")
    e(f"s_lshl_b32 s{sT}, s{sRec}, 10"); e(f"v_add_u32 v{vLW}, s{sT}, v{vA}")
    e(f"s_lshl_b32 s{sT}, s{sRec}, 5"); e(f"s_add_u32 s{sT}, s{sT}, {MLB}")
    e(f"v_lshl_add_u32 v{vOut}, v{vLane}, 1, s{sT}")
    for r in range(0, 4, 2): e(f"v_mov_b64 v[{hP+r}:{hP+r+1}], -1")
    e(f"ds_write_b128 v{vA}, v[{hP}:{hP+3}] offset:{MLX}")
    c("this workgroup reduces output slice c = split: h = c&3, g = (c>>2)&3, w = c>>4; lane = (producer l>>1, which l&1)")
    e(f"s_lshl_b32 s{sT}, s{sKV}, 8")
    e(f"v_add_u32 v{vt2}, s{sT}, v{vt2}")
    e(f"v_and_b32 v{vt}, 1, v{vLane}")
    e(f"s_bfe_u32 s{sT2}, s{sSplit}, 0x20002"); e(f"s_lshl_b32 s{sT2}, s{sT2}, 6"); e(f"s_add_u32 s{sT}, s{sT}, s{sT2}")
    e(f"s_lshr_b32 s{sT2}, s{sSplit}, 4"); e(f"s_lshl_b32 s{sT2}, s{sT2}, 3"); e(f"s_add_u32 s{sT}, s{sT}, s{sT2}")
    e(f"v_lshl_add_u32 v{vLR}, v{vt}, 2, s{sT}")
    e(f"v_mov_b32 v{vnmc}, 0")
    e("s_waitcnt lgkmcnt(0)")
    e("s_barrier")
    c("poison this workgroup's hand-off slots (plain stores: they stay in this XCD's L2)")
    e(f"global_store_dwordx4 v{vLW}, v[{hP}:{hP+3}], s[20:21]")
    e("s_mov_b64 exec, 0x1111")
    e(f"global_store_dwordx2 v{vOut}, v[{hP}:{hP+1}], s[20:21]")
    e("s_mov_b64 exec, -1")
    if amp2:
        e(f"s_cmp_lg_u32 s{sSplit}, 0"); e("s_cbranch_scc1 L_nopub")
        e(f"s_lshl_b32 s{sT}, s{sKV}, 2"); e(f"s_add_u32 s{sT}, s{sT}, 0x2000000"); e(f"v_mov_b32 v{hO}, s{sT}"); e(f"v_mov_b32 v{hO+1}, s56")
        e("s_mov_b64 exec, 1"); e(f"global_store_dword v{hO}, v{hO+1}, s[20:21] sc1"); e("s_mov_b64 exec, -1")
        lab("L_nopub")
    e(f"global_load_dwordx4 v[{vQ}:{vQ+3}], v{vmx}, s[4:5]")
    e(f"global_load_dwordx4 v[{hKT}:{hKT+3}], v{vt2}, s[10:11]")
    for k in range(4): e(f"global_load_dword v{hVT+k}, v{vLR}, s[12:13] offset:{32*(k>>1) + 16*(k&1)}")
    e(f"global_load_ushort v{hMask}, v{vnmc}, s[14:15]")
    e(f"s_and_b32 s{sMT}, s{sSplit}, 3")
    e(f"s_mul_i32 s{sT}, s{sKV}, 768"); e(f"s_lshl_b32 s{sT2}, s{sMT}, 8"); e(f"s_add_u32 s{sT}, s{sT}, s{sT2}"); e(f"v_add_u32 v{vOA}, s{sT}, v{vLR}")
    e(f"v_lshrrev_b32 v{vmx}, 5, v{vLane}"); e(f"v_lshl_add_u32 v{vOA}, v{vmx}, 4, v{vOA}")
    e(f"v_bfe_u32 v{vmx}, v{vLane}, 4, 1"); e(f"v_lshl_add_u32 v{vOA}, v{vmx}, 5, v{vOA}")
    e(f"v_lshrrev_b32 v{vmx}, 1, v{vLane}")
    e(f"s_lshl_b32 s{sT}, s{sKV}, 10"); e(f"s_lshl_b32 s{sT2}, s{sMT}, 3"); e(f"s_add_u32 s{sT}, s{sT}, s{sT2}"); e(f"s_add_u32 s{sT}, s{sT}, {MLB}")
    e(f"v_lshl_add_u32 v{vCM}, v{vmx}, 5, s{sT}")
    e(f"s_lshl_b32 s{sT}, s{sKV}, 15"); e(f"s_lshl_b32 s{sT2}, s{sMT}, 5"); e(f"s_add_u32 s{sT}, s{sT}, s{sT2}")
    e(f"s_bfe_u32 s{sT2}, s{sSplit}, 0x20002"); e(f"s_lshl_b32 s{sT2}, s{sT2}, 7"); e(f"s_add_u32 s{sT}, s{sT}, s{sT2}")
    e(f"s_lshr_b32 s{sT2}, s{sSplit}, 4"); e(f"s_lshl_b32 s{sT2}, s{sT2}, 9"); e(f"s_add_u32 s{sT}, s{sT}, s{sT2}")
    e(f"v_lshl_add_u32 v{vCO}, v{vmx}, 10, s{sT}"); e(f"v_lshl_add_u32 v{vCO}, v{vt}, 4, v{vCO}")
    c("arm: once the poison is in L2, d_debug byte [kv*32+split] = 0x80 | XCC id (plain store)")
    e(f"s_getreg_b32 s{sInc}, hwreg(HW_REG_XCC_ID, 0, 4)")
    e(f"s_or_b32 s{sInc}, s{sInc}, 0x80")
    e(f"s_lshl_b32 s{sT}, s{sKV}, 5")
    e(f"v_mov_b32 v{vt}, s{sRec}"); e(f"v_mov_b32 v{vt2}, s{sInc}")
    e(f"v_and_b32 v{vMW}, 7, v{vLane}"); e(f"v_lshl_add_u32 v{vMW}, v{vMW}, 2, s{sT}")
    e(f"s_mul_i32 s{sInc}, s{sInc}, 0x01010101"); e(f"s_lshl_b32 s{sMT}, s{sMT}, 2")
    e("s_waitcnt vmcnt(0)")
    e("s_mov_b64 exec, 1")
    e(f"global_store_byte v{vt}, v{vt2}, s[18:19]")
    e("s_mov_b64 exec, -1")
    c("tree token: raw score q.k_tree + (1-mask)*(-1e9/scale) and its v_tree slice (lanes 0,1 only)")
    qk(vD, hKT)
    e(f"v_lshlrev_b32 v{hMask}, 16, v{hMask}"); e(f"v_sub_f32 v{hMask}, 1.0, v{hMask}"); e(f"s_mov_b32 s{sT}, {f32(BIG)}")
    e(f"v_cmp_gt_u32 vcc, 2, v{vLane}")
    for k in range(8):
        if k & 4: e(f"v_and_b32 v{hTa+k}, 0xffff0000, v{hVT + (k & 3)}")
        else: e(f"v_lshlrev_b32 v{hTa+k}, 16, v{hVT + (k & 3)}")
    for k in range(8): e(f"v_cndmask_b32 v{hTa+k}, 0, v{hTa+k}, vcc")
    e(f"v_mov_b32_dpp v{vT}, v{vD} quad_perm:[0,0,0,0]{DPP}")
    for u in range(1, 4): e(f"v_add_f32_dpp v{vT}, v{vD+u}, v{vT} quad_perm:[{u},{u},{u},{u}]{DPP}")
    e(f"v_fma_f32 v{vT}, v{hMask}, s{sT}, v{vT}")
    e(f"v_readlane_b32 s{sMT}, v{vT}, s{sMT}")
    e(f"v_lshlrev_b32 v{vt2}, 3, v{vLane}")
    e(f"s_mov_b32 s{sCnt}, {spin}")
    def mlread(): e(f"ds_read2st64_b64 v[{vD}:{vD+3}], v{vt2} offset0:{MLX//512} offset1:{MLX//512+1}")
    def mlcheck():
        e(f"v_max3_u32 v{vt}, v{vD}, v{vD+1}, v{vD+2}"); e(f"v_max_u32 v{vt}, v{vt}, v{vD+3}")
        e(f"v_cmp_eq_u32 vcc, -1, v{vt}")
    c("FAST iff all 32 workgroups of this head have armed on this XCD; still open when our (m,l) are ready -> SLOW")
    lab("L_armchk")
    e(f"s_sleep {asleep}")
    e(f"global_load_dword v{hCnt}, v{vMW}, s[18:19] sc1")
    mlread()
    e(f"s_mov_b32 s{sFast}, {0 if force == 'slow' else 1}")
    e("s_waitcnt vmcnt(0) lgkmcnt(0)")
    e(f"v_and_b32 v{hCnt}, 0xbfbfbfbf, v{hCnt}"); e(f"v_cmp_ne_u32 vcc, s{sInc}, v{hCnt}")
    e("s_cbranch_vccz L_armed")
    mlcheck()
    e("s_cbranch_vccnz L_armchk")
    e(f"s_mov_b32 s{sFast}, 0")
    lab("L_armed")
    e(f"v_mov_b32 v{vt}, s{sFast}"); e(f"ds_write_b32 v{vnmc}, v{vt} offset:{FLAG}")
    c("wait for the streaming waves' (m,l), merge them, publish (M,L)")
    lab("L_ldspoll")
    e(f"s_sleep {lsleep}")
    mlread()
    e("s_waitcnt lgkmcnt(0)")
    mlcheck()
    e("s_cbranch_vccnz L_ldspoll")
    e(f"v_max_f32 v{vML}, v{vD}, v{vD+2}")
    e(f"v_mul_f32 v{vnmc}, s{sNC}, v{vML}")
    for j in range(2): e(f"v_fma_f32 v{vX+j}, v{vD+2*j}, s{sC}, v{vnmc}")
    for j in range(2): e(f"v_exp_f32 v{vX+j}, v{vX+j}")
    e(f"s_cmp_eq_u32 s{sFast}, 0")
    e(f"v_mul_f32 v{vML+1}, v{vX}, v{vD+1}")
    e(f"v_fma_f32 v{vML+1}, v{vX+1}, v{vD+3}, v{vML+1}")
    e(f"ds_write_b64 v{vt2}, v[{vX}:{vX+1}] offset:{BX}")
    e(f"v_min_u32 v{vML+1}, -2, v{vML+1}")
    e("s_mov_b64 exec, 0x1111")
    e("s_cbranch_scc1 L_slowM")
    e(f"global_store_dwordx2 v{vOut}, v[{vML}:{vML+1}], s[20:21]")
    lab("L_mgo")
    e("s_mov_b64 exec, -1")
    c("gather the 32 (M,L) of this head and turn them into final weights")
    lab("L_pollM")
    e(f"s_sleep {msleep}")
    e(f"global_load_dwordx2 v[{hML}:{hML+1}], v{vCM}, s[20:21] sc1")
    e(f"s_sub_u32 s{sCnt}, s{sCnt}, 1"); e("s_cbranch_scc1 L_mto")
    e("s_waitcnt vmcnt(0)")
    e(f"v_max_u32 v{vmx}, v{hML}, v{hML+1}"); e(f"v_cmp_eq_u32 vcc, -1, v{vmx}")
    e("s_cbranch_vccnz L_pollM")
    lab("L_mto")
    stamp_async(1)
    e(f"v_max_f32 v{vmx}, s{sMT}, v{hML}")
    xrow(vmx, "v_max_f32")
    for ctl in ("row_ror:8", "row_ror:4", "quad_perm:[2,3,0,1]"): e(f"v_max_f32_dpp v{vmx}, v{vmx}, v{vmx} {ctl}{DPP}")
    e(f"v_sub_f32 v{hG}, v{hML}, v{vmx}"); e(f"v_sub_f32 v{vAL}, s{sMT}, v{vmx}")
    e(f"v_mul_f32 v{hG}, s{sC}, v{hG}"); e(f"v_mul_f32 v{vAL}, s{sC}, v{vAL}")
    e(f"v_exp_f32 v{hG}, v{hG}"); e(f"v_exp_f32 v{vAL}, v{vAL}")
    e(f"v_mul_f32 v{vmx}, v{hG}, v{hML+1}")
    xrow(vmx, "v_add_f32")
    for ctl in ("row_ror:8", "row_ror:4", "quad_perm:[2,3,0,1]"): e(f"v_add_f32_dpp v{vmx}, v{vmx}, v{vmx} {ctl}{DPP}")
    e(f"v_add_f32 v{vmx}, v{vmx}, v{vAL}"); e(f"v_rcp_f32 v{vmx}, v{vmx}")
    e(f"v_mul_f32 v{hG}, v{hG}, v{vmx}"); e(f"v_mul_f32 v{vAL}, v{vAL}, v{vmx}")
    for r in range(0, 8, 2): e(f"v_pk_mul_f32 v[{hTa+r}:{hTa+r+1}], v[{hTa+r}:{hTa+r+1}], v[{vAL}:{vAL+1}] op_sel_hi:[1,0]")
    e(f"s_mov_b32 s{sCnt}, {spin}")
    e(f"s_mov_b32 s{sOdd}, 0x00030003"); e(f"s_mov_b32 s{sOdd+1}, 0x00030003")
    e(f"s_cmp_eq_u32 s{sFast}, 0"); e("s_cbranch_scc1 L_pollO")
    e("s_waitcnt lgkmcnt(0)"); e("s_barrier")
    def oload(): e(f"global_load_dwordx4 v[{hO}:{hO+3}], v{vCO}, s[20:21] sc1")
    def ocheck():
        e(f"v_max3_u32 v{vt}, v{hO}, v{hO+1}, v{hO+2}"); e(f"v_max_u32 v{vt}, v{vt}, v{hO+3}")
        e(f"v_cmp_eq_u32 vcc, -1, v{vt}")
    c("gather the partials: only lanes still holding poison keep loading; the last few are polled back to back")
    lab("L_pollO")
    oload()
    if osleep: e(f"s_sleep {osleep}")
    e(f"s_sub_u32 s{sCnt}, s{sCnt}, 1"); e("s_cbranch_scc1 L_fin")
    e("s_waitcnt vmcnt(0)")
    ocheck()
    e(f"s_bcnt1_i32_b64 s{sT2}, vcc"); e("s_cbranch_scc0 L_done")
    e("s_mov_b64 exec, vcc")
    e(f"s_cmp_gt_u32 s{sT2}, {thr}"); e("s_cbranch_scc1 L_pollO")
    lab("L_pollO2")
    oload()
    e(f"s_sub_u32 s{sCnt}, s{sCnt}, 1"); e("s_cbranch_scc1 L_fin")
    e(f"s_waitcnt vmcnt({pdepth-1})")
    ocheck()
    e("s_and_b64 exec, exec, vcc"); e("s_cbranch_scc1 L_pollO2")
    lab("L_done")
    e("s_mov_b64 exec, -1")
    stamp_async(2)
    R_ = hTa; U_ = vD
    for k in range(4):
        e(f"v_lshlrev_b32 v{U_+2*k}, 16, v{hO+k}"); e(f"v_and_b32 v{U_+2*k+1}, 0xffff0000, v{hO+k}")
    for r in range(0, 8, 2): e(f"v_pk_fma_f32 v[{R_+r}:{R_+r+1}], v[{U_+r}:{U_+r+1}], v[{hG}:{hG+1}], v[{hTa+r}:{hTa+r+1}] op_sel_hi:[1,0,1]")
    for r in range(0, 8, 2): e(f"v_permlane32_swap_b32 v{R_+r}, v{R_+r+1}")
    for r in range(0, 8, 2): e(f"v_add_f32 v{R_+r}, v{R_+r}, v{R_+r+1}")
    e(f"v_permlane16_swap_b32 v{R_}, v{R_+2}"); e(f"v_permlane16_swap_b32 v{R_+4}, v{R_+6}")
    e(f"v_add_f32 v{R_}, v{R_}, v{R_+2}"); e(f"v_add_f32 v{R_+4}, v{R_+4}, v{R_+6}")
    for ctl in ("row_ror:8", "row_ror:4", "quad_perm:[2,3,0,1]"):
        for x in (R_, R_ + 4): e(f"v_add_f32_dpp v{x}, v{x}, v{x} {ctl}{DPP}")
    e(f"s_mov_b64 exec, s[{sOdd}:{sOdd+1}]")
    e(f"v_cvt_pk_bf16_f32 v{R_}, v{R_}, v{R_+4}")
    e(f"global_store_dword v{vOA}, v{R_}, s[16:17]")
    if stamps:
        e("s_mov_b64 exec, -1")
        stamp(61); e("s_waitcnt vmcnt(0)"); stamp(62)
        e(f"v_writelane_b32 v{vSt}, s{sSt+2}, 59"); e(f"v_writelane_b32 v{vSt}, s{sSt+4}, 60")
    lab("L_fin")
    if amp:
        e("s_waitcnt vmcnt(0)"); e("s_memrealtime s[58:59]"); e("s_waitcnt lgkmcnt(0)")
        if amp2:
            e("s_mov_b64 exec, -1")
            e(f"v_and_b32 v{vt}, 7, v{vLane}"); e(f"v_lshlrev_b32 v{vt}, 2, v{vt}"); e(f"v_add_u32 v{vt}, 0x2000000, v{vt}")
            e(f"global_load_dword v{vt}, v{vt}, s[20:21] sc1"); e("s_waitcnt vmcnt(0)")
            e(f"v_sub_u32 v{vt}, s58, v{vt}")
            for k in range(8):
                e(f"v_readlane_b32 s61, v{vt}, {k}"); e("s_nop 1")
                e("s_mov_b32 s60, s61" if k == 0 else "s_max_u32 s60, s60, s61")
            e("s_min_u32 s60, s60, 4000"); e("s_sub_u32 s56, s58, s60")
        e("s_sub_u32 s60, s58, s56"); e(f"s_mul_i32 s60, s60, {amp}"); e("s_add_u32 s60, s60, 6000")
        lab("L_amp")
        e("s_memrealtime s[58:59]"); e("s_waitcnt lgkmcnt(0)"); e("s_sub_u32 s61, s58, s56"); e("s_cmp_lt_u32 s61, s60"); e("s_cbranch_scc1 L_amp")
    if stamps:
        e("s_mov_b64 exec, -1")
        e(f"s_mul_i32 s{sT}, s2, {W+1}"); e(f"s_add_u32 s{sT}, s{sT}, s{sWave}"); e(f"s_lshl_b32 s{sT}, s{sT}, 8")
        e("s_add_u32 s20, s20, 0x8000000"); e("s_addc_u32 s21, s21, 0")
        e(f"v_lshl_add_u32 v{vt}, v{vLane}, 2, s{sT}")
        e(f"global_store_dword v{vt}, v{vSt}, s[20:21]")
    lab("L_end")
    e("s_endpgm")
    c("SLOW: everything is written through; bit 6 of our d_debug byte (memory-side atomic) says so; wait for all 32")
    lab("L_slowM")
    e(f"global_store_dwordx2 v{vOut}, v[{vML}:{vML+1}], s[20:21] sc1")
    e("s_mov_b64 exec, -1")
    e("s_waitcnt lgkmcnt(0)"); e("s_barrier")
    e(f"s_and_b32 s{sT}, s{sRec}, 0xfc")
    e(f"s_and_b32 s{sT2}, s{sSplit}, 3"); e(f"s_lshl_b32 s{sT2}, s{sT2}, 3"); e(f"s_lshl_b32 s{sT2}, 0x40, s{sT2}")
    e(f"v_mov_b32 v{vt}, s{sT}"); e(f"v_mov_b32 v{vt2}, s{sT2}"); e(f"v_mov_b32 v{vnmc}, 0")
    e("s_waitcnt vmcnt(0)"); e("s_barrier")
    e("s_mov_b64 exec, 1")
    e(f"global_atomic_or v{vt}, v{vt2}, s[18:19]")
    lab("L_slowwait")
    e("s_mov_b64 exec, 0xff")
    e(f"global_atomic_or v{vmx}, v{vMW}, v{vnmc}, s[18:19] sc0")
    e(f"global_load_dword v{hCnt}, v{vMW}, s[18:19] sc1")
    e("s_waitcnt vmcnt(0)")
    e(f"v_and_b32 v{vmx}, 0x40404040, v{vmx}"); e(f"v_cmp_ne_u32 vcc, 0x40404040, v{vmx}")
    e("s_cbranch_vccz L_mgo")
    if force != 'slow':
        e(f"v_and_b32 v{hCnt}, 0xbfbfbfbf, v{hCnt}"); e(f"v_cmp_ne_u32 vcc, s{sInc}, v{hCnt}")
        e("s_cbranch_vccz L_mgo")
    e("s_sleep 32")
    e(f"s_sub_u32 s{sCnt}, s{sCnt}, 1"); e("s_cbranch_scc0 L_slowwait")
    e("s_branch L_fin")
    lab("L_codeend")
    L.append('.section .rodata,"a"'); L.append(".p2align 6"); L.append(f".amdhsa_kernel {KN}_kernel")
    L.append(f"  .amdhsa_next_free_vgpr {nv}"); L.append("  .amdhsa_next_free_sgpr 64"); L.append(f"  .amdhsa_accum_offset {(nv+3)//4*4}")
    L.append("  .amdhsa_group_segment_fixed_size 0"); L.append("  .amdhsa_kernarg_size 72"); L.append("  .amdhsa_user_sgpr_count 2")
    L.append("  .amdhsa_user_sgpr_kernarg_segment_ptr 1"); L.append("  .amdhsa_system_sgpr_workgroup_id_x 1"); L.append(".end_amdhsa_kernel")
    s = "\n".join(L) + "\n"
    s, n = hazard.fix(s)
    pr = hazard.check_branches(s)
    assert not pr, pr
    return s
DOC = """;
;
;       O[h][32g + 8r + e (+4)].
;
;"""
if __name__ == "__main__":
    name = sys.argv[1]; kw = {}
    for a in sys.argv[2:]:
        k, v = a.split("=", 1)
        if k != "d1":
            try: v = int(v)
            except ValueError: pass
        if k == "ldflags": v = v.replace("+", " ").replace("none", "")
        kw[k] = v
    open(name if "/" in name else f"build/{name}.s", "w").write(gen(**kw))
```

```python
import sys, struct, math
sys.path.insert(0, "tools")
import hazard
KN = "standalone__tree_speculative_verify_tree_attention_over_candidate_token_tree__decode"
def f32(x): return "0x%08x" % struct.unpack("<I", struct.pack("<f", x))[0]
SCALE = 128 ** -0.5
CC = SCALE * math.log2(math.e)
BIG = -1e9 / SCALE
HDR = open("cdna_kernels/" + KN + ".s.ref").read().split("; Override launch")[0]

def gen(LA=13, d1="a", KV=4, dloop=1, LP=0, stamps=0, ldflags="nt", spin=1 << 20, force="", hprio=0, pdepth=5,
        msleep=4, lsleep=4, asleep=8, osleep=1, pf=1, thr=8, amp=0, amp2=0, doc=0, late=0, lateall=0, xch=1, nofin=0, nopoll=0, nohelp=0, dT='', dV='', qf='', qpos=0):
    W = 2; NWG = 256; NT = 128; NTOT = 256; NSLOT = 16; IG = 8; NP = 32
    d1 = [int(x, 36) for x in str(d1)]
    GSTEP = IG * W * 1024; REG = NT * W * 1024
    REC = 1024; MLB = 256 * REC
    MLX, BX, FLAG = (2048, 3072, 4096) if xch else (4096, 5120, 5632)
    lds = FLAG + 16
    L = []
    def e(s): L.append("    " + s)
    def c(s):
        if doc: L.append("    ; " + s)
    def lab(s): L.append(s + ":")
    DPP = " row_mask:0xf bank_mask:0xf"
    vK, vV, vM0, vM1 = 1, 2, 3, 4
    vt = 5; vmx = 6; vnmc = 7; vML = 8; vQ = 10; vA = 14; vD = 22; vT = 38; vX = 42; vLs = 46
    vLW = 48; vLR = 49; vMW = 50; vLane = 51; vt2 = 52; vOut = 53; vSt = 54; vAL = 56
    vP = 58; vR = vP + NP
    nv = vR + 4 * NSLOT
    sWave = 3; sKV = 22; sSplit = 23; sInc = 24; sC = 25; sNC = 26; sCnt = 27; sT = 28; sT2 = 29; sRec = 30; sMT = 31
    sK = 32; s4k = 36; sSt = 40; sOdd = 48; sHi = 50; sFast = 52; sSw = 54
    def stamp(slot):
        if stamps:
            e(f"s_memrealtime s[{sSt}:{sSt+1}]"); e("s_waitcnt lgkmcnt(0)"); e(f"v_writelane_b32 v{vSt}, s{sSt}, {slot}")
    def stamp_async(k):
        if stamps: e(f"s_memrealtime s[{sSt + 2*k}:{sSt + 2*k + 1}]")
    L.append(HDR.rstrip())
    L.append(f"; @launch grid=({NWG},1,1) block=({(W+1)*64},1,1) lds={lds}")
    if doc: L.append(DOC.rstrip())
    L.append('.amdgcn_target "amdgcn-amd-amdhsa--gfx950"')
    L.append(".text"); L.append(f".globl {KN}_kernel"); L.append(".p2align 8"); L.append(f".type {KN}_kernel,@function"); L.append(f"{KN}_kernel:")
    stamp_async(1)
    if amp: e("s_memrealtime s[56:57]")
    c("s[4:5] q  s[6:7] k  s[8:9] v  s[10:11] k_tree  s[12:13] v_tree  s[14:15] mask  s[16:17] out  s[18:19] debug  s[20:21] ws")
    e("s_load_dwordx16 s[4:19], s[0:1], 0")
    e("s_load_dwordx2 s[20:21], s[0:1], 64")
    e(f"s_cmp_ge_u32 s2, {NWG}"); e("s_cbranch_scc1 L_end")
    e(f"v_lshrrev_b32 v{vt}, 6, v0")
    e(f"v_and_b32 v{vLane}, 63, v0")
    e(f"v_readfirstlane_b32 s{sWave}, v{vt}")
    e(f"s_and_b32 s{sKV}, s2, 7"); e(f"s_lshr_b32 s{sSplit}, s2, 3")
    c("K/Q tile lane offset: row ((l>>2)&3)*256 + 16-byte chunk (4*(l>>4) + (l&3))")
    e(f"v_lshrrev_b32 v{vt}, 4, v{vLane}"); e(f"v_lshlrev_b32 v{vt2}, 6, v{vt}")
    e(f"v_and_b32 v{vt}, 3, v{vLane}"); e(f"v_lshl_add_u32 v{vt2}, v{vt}, 4, v{vt2}")
    e(f"v_bfe_u32 v{vK}, v{vLane}, 2, 2"); e(f"v_lshl_add_u32 v{vK}, v{vK}, 8, v{vt2}")
    e(f"s_lshl_b32 s{sT2}, s{sKV}, 10")
    e(f"v_add_u32 v{vmx}, s{sT2}, v{vK}")
    if stamps: e(f"v_mov_b32 v{vSt}, 0")
    if lateall:
        e(f"s_and_b32 s{sT}, s{sSplit}, 7"); e(f"s_cmp_lg_u32 s{sT}, 3"); e("s_cbranch_scc1 L_notlate2")
        for _ in range(lateall): e("s_sleep 127")
        lab("L_notlate2")
    e(f"s_cmp_eq_u32 s{sWave}, {W}"); e("s_cbranch_scc1 L_helper")
    c("================ streaming waves ================")
    e(f"s_lshl_b32 s{sT}, s{sKV}, 23"); e(f"s_lshl_b32 s{sT2}, s{sSplit}, 18"); e(f"s_add_u32 s{sT}, s{sT}, s{sT2}")
    e(f"s_lshl_b32 s{sT2}, s{sWave}, 13"); e(f"s_add_u32 s{sT}, s{sT}, s{sT2}")
    e(f"s_mov_b32 s{sK+2}, 0x4000000"); e(f"s_mov_b32 s{sK+3}, 0x20000"); e(f"s_movk_i32 s{s4k}, 0x1000")
    e(f"v_add_u32 v{vK}, s{sT}, v{vK}")
    e(f"v_lshl_add_u32 v{vV}, v{vLane}, 4, s{sT}")
    e("s_waitcnt lgkmcnt(0)")
    stamp_async(2)
    e(f"s_mov_b32 s{sK}, s6"); e(f"s_mov_b32 s{sK+1}, s7")
    st = dict(I=0, C=0, cons=0, kloop=False, deep=False)
    def slot(n): return vR + 4 * (n % NSLOT)
    def issue():
        n = st["I"]; reg = slot(n)
        if n % 16 == 0 and st["kloop"]:
            c("last K iteration (SCC=1): the load stream moves on from K to V")
            e(f"s_cselect_b64 s[{sK}:{sK+1}], s[8:9], s[{sK}:{sK+1}]"); e(f"s_cselect_b64 s[{sSw}:{sSw+1}], -1, 0")
            e(f"v_cndmask_b32 v{vK}, v{vK}, v{vV}, s[{sSw}:{sSw+1}]")
        e(f"buffer_load_dwordx4 v[{reg}:{reg+3}], v{vK}, s[{sK}:{sK+3}], {'s%d' % s4k if n % 8 >= 4 else 0} offen offset:{(n % 4)*1024} {ldflags}")
        if n % IG == IG - 1 and n != NTOT - 1: e(f"v_add_u32 v{vK}, {GSTEP}, v{vK}")
        st["I"] += 1
    def needdata(n):
        if st["C"] < n + 1:
            e(f"s_waitcnt vmcnt({st['I'] - n - 1})"); st["C"] = n + 1
    def gate():
        if st["I"] >= min(NTOT, st["cons"] + NSLOT): return
        if not st["deep"]:
            dd = st.get("dd", d1)
            w = dd[st["I"] % len(dd)]
            if st["C"] < st["I"] - w + 1:
                e(f"s_waitcnt vmcnt({w-1})"); st["C"] = st["I"] - w + 1
            issue()
        else:
            while st["I"] < min(NTOT, st["cons"] + NSLOT): issue()
    LP = LP or LA
    for n in range(LP):
        if n == qpos and qf != "none": e(f"global_load_dwordx4 v[{vQ}:{vQ+3}], v{vmx}, s[4:5] {qf}")
        issue()
    e(f"s_mov_b32 s{sC}, {f32(CC)}"); e(f"s_mov_b32 s{sNC}, {f32(-CC)}")
    e(f"s_mov_b32 s{sOdd}, 0xaaaaaaaa"); e(f"s_mov_b32 s{sOdd+1}, 0xaaaaaaaa"); e(f"s_mov_b32 s{sHi}, 0xcccccccc"); e(f"s_mov_b32 s{sHi+1}, 0xcccccccc")
    c("per-lane masks that drop a bf16 weight into k-slot (l&3) of the P operand")
    e(f"v_and_b32 v{vt}, 1, v{vLane}"); e(f"v_lshlrev_b32 v{vt}, 4, v{vt}"); e(f"v_mov_b32 v{vmx}, 0xffff"); e(f"v_lshlrev_b32 v{vt}, v{vt}, v{vmx}")
    e(f"v_bfe_i32 v{vmx}, v{vLane}, 1, 1")
    e(f"v_and_b32 v{vM1}, v{vmx}, v{vt}"); e(f"v_xor_b32 v{vM0}, v{vM1}, v{vt}")
    e(f"v_lshlrev_b32 v{vMW}, 3, v{vLane}")
    if xch:
        e(f"s_lshl_b32 s{sT}, s{sWave}, 10"); e(f"v_lshl_add_u32 v{vLW}, v{vLane}, 4, s{sT}"); e(f"v_xor_b32 v{vLR}, 0x400, v{vLW}")
    else:
        e(f"s_lshl_b32 s{sT}, s{sWave}, 11"); e(f"v_add_u32 v{vLW}, s{sT}, v{vMW}")
        e(f"s_lshl_b32 s{sT}, s{sWave}, 10"); e(f"v_add_u32 v{vLR}, s{sT}, v{vMW}")
    e(f"s_lshl_b32 s{sT}, s{sKV}, 5"); e(f"s_add_u32 s{sT}, s{sT}, s{sSplit}"); e(f"s_lshl_b32 s{sT}, s{sT}, 1"); e(f"s_add_u32 s{sT}, s{sT}, s{sWave}")
    e(f"s_lshl_b32 s{sT}, s{sT}, 9"); e(f"v_add_u32 v{vOut}, s{sT}, v{vMW}")
    e(f"s_lshl_b32 s{sT}, s{sWave}, 9"); e(f"v_add_u32 v{vt2}, s{sT}, v{vMW}")
    for r in range(0, 8, 2): e(f"v_mov_b64 v[{vA+r}:{vA+r+1}], 0")
    e(f"v_mov_b32 v{vmx}, 0xff800000"); e(f"s_mov_b32 s{sCnt}, 8")
    e("s_barrier")
    if stamps:
        e(f"s_getreg_b32 s{sT}, hwreg(HW_REG_XCC_ID)"); e(f"s_getreg_b32 s{sT2}, hwreg(HW_REG_HW_ID)")
        e("s_waitcnt lgkmcnt(0)")
        e(f"v_writelane_b32 v{vSt}, s{sT}, 2"); e(f"v_writelane_b32 v{vSt}, s{sT2}, 3")
        e(f"v_writelane_b32 v{vSt}, s{sSt+2}, 0"); e(f"v_writelane_b32 v{vSt}, s{sSt+4}, 1")
    while st["I"] < LA: gate()
    st["C"] = max(0, min(st["C"], LA - max(d1) ))
    def xrow(x, op):
        e(f"v_mov_b32 v{vt}, v{x}")
        e(f"v_permlane32_swap_b32 v{x}, v{vt}"); e(f"{op} v{x}, v{x}, v{vt}")
        e(f"v_mov_b32 v{vt}, v{x}")
        e(f"v_permlane16_swap_b32 v{x}, v{vt}"); e(f"{op} v{x}, v{x}, v{vt}")
    def qk(dst, src): e(f"v_mfma_f32_16x16x32_bf16 v[{dst}:{dst+3}], v[{src}:{src+3}], v[{vQ}:{vQ+3}], 0")
    def rotP(lo, hi):
        for r in range(lo, hi, 2): e(f"v_mov_b64 v[{vP+r}:{vP+r+1}], v[{vP+r+4}:{vP+r+5}]")
    c("---- K phase: 8 iterations x 4 groups x 4 tiles (a tile = 4 positions = one 1 KiB load)")
    st["C"] = 0
    lab("L_kloop")
    e(f"s_cmp_eq_u32 s{sCnt}, 1")
    st["kloop"] = True
    for g in range(4):
        gate()
        needdata(4 * g + 3)
        for t in range(4): qk(vD + 4 * t, slot(4 * g + t))
        st["cons"] = 4 * g + 4
        gate()
        rotP(8 * g, min(8 * g + 8, NP - 4))
        for u in range(4):
            for t in range(4):
                if u == 0: e(f"v_mov_b32_dpp v{vT+t}, v{vD+4*t} quad_perm:[0,0,0,0]{DPP}")
                else: e(f"v_add_f32_dpp v{vT+t}, v{vD+4*t+u}, v{vT+t} quad_perm:[{u},{u},{u},{u}]{DPP}")
            if u == 1: gate()
        e(f"v_cndmask_b32 v{vT}, v{vT}, v{vT+1}, s[{sOdd}:{sOdd+1}]")
        e(f"v_cndmask_b32 v{vT+2}, v{vT+2}, v{vT+3}, s[{sOdd}:{sOdd+1}]")
        dst = [vX, vX + 1, vX + 2, vP + NP - 1][g]
        e(f"v_cndmask_b32 v{dst}, v{vT}, v{vT+2}, s[{sHi}:{sHi+1}]")
        if g == 1: e(f"v_max3_f32 v{vmx}, v{vmx}, v{vX}, v{vX+1}")
        if g == 3:
            e(f"v_max3_f32 v{vmx}, v{vmx}, v{vX+2}, v{vP+NP-1}")
            e(f"v_mov_b64 v[{vP+NP-4}:{vP+NP-3}], v[{vX}:{vX+1}]"); e(f"v_mov_b32 v{vP+NP-2}, v{vX+2}")
        gate()
    st["kloop"] = False
    assert st["I"] == 16 + LA, st
    if stamps == 2:
        e(f"s_memrealtime s[{sSt}:{sSt+1}]"); e(f"s_sub_u32 s{sT}, 12, s{sCnt}"); e("s_waitcnt lgkmcnt(0)")
        e(f"s_mov_b32 m0, s{sT}"); e(f"v_writelane_b32 v{vSt}, s{sSt}, m0")
    e(f"s_sub_u32 s{sCnt}, s{sCnt}, 1"); e(f"s_cmp_lg_u32 s{sCnt}, 0"); e("s_cbranch_scc1 L_kloop")
    for k in ("I", "C", "cons"): st[k] += NT - 16
    if dT: st["dd"] = [int(x, 36) for x in str(dT)]
    c("---- true max of this wave's 512 scores per head")
    e(f"v_max_f32_dpp v{vmx}, v{vmx}, v{vmx} quad_perm:[1,0,3,2]{DPP}")
    e(f"v_max_f32_dpp v{vmx}, v{vmx}, v{vmx} quad_perm:[2,3,0,1]{DPP}")
    gate()
    xrow(vmx, "v_max_f32")
    e(f"v_mul_f32 v{vnmc}, s{sNC}, v{vmx}"); e(f"v_min_u32 v{vML}, -2, v{vmx}")
    gate()
    def softp(g):
        for k in (g, g + 1): e(f"v_fma_f32 v{vP+k}, v{vP+k}, s{sC}, v{vnmc}")
        for k in (g, g + 1): e(f"v_exp_f32 v{vP+k}, v{vP+k}")
        if g == 0: e(f"v_mov_b64 v[{vLs}:{vLs+1}], v[{vP}:{vP+1}]")
        else: e(f"v_pk_add_f32 v[{vLs}:{vLs+1}], v[{vLs}:{vLs+1}], v[{vP+g}:{vP+g+1}]")
        for k in (g, g + 1): e(f"v_cvt_pk_bf16_f32 v{vP+k}, v{vP+k}, v{vP+k}")
    softp(0)
    gate()
    def mkx(t, pbase):
        if t < NT:
            X = vX + 2 * (t % 2); k = t % 4
            e(f"v_and_b32_dpp v{X}, v{vP + t//4 - pbase}, v{vM0} quad_perm:[{k},{k},{k},{k}]{DPP}")
            e(f"v_and_b32_dpp v{X+1}, v{vP + t//4 - pbase}, v{vM1} quad_perm:[{k},{k},{k},{k}]{DPP}")
    def vtile(t, pbase, extra=None):
        needdata(NT + t)
        if nofin and t >= nofin:
            st["cons"] = NT + t + 1; gate(); return
        src = slot(NT + t); X = vX + 2 * (t % 2)
        e(f"v_mfma_f32_16x16x16_bf16 v[{vA}:{vA+3}], v[{src}:{src+1}], v[{X}:{X+1}], v[{vA}:{vA+3}]")
        e(f"v_mfma_f32_16x16x16_bf16 v[{vA+4}:{vA+7}], v[{src+2}:{src+3}], v[{X}:{X+1}], v[{vA+4}:{vA+7}]")
        st["cons"] = NT + t + 1
        gate()
        if extra: extra()
        mkx(t + 2, pbase)
    mkx(0, 0); mkx(1, 0)
    c("---- V phase, first 16 tiles: the remaining exponentials ride along")
    def fin_l():
        e(f"v_add_f32 v{vML+1}, v{vLs}, v{vLs+1}")
        e(f"v_add_f32_dpp v{vML+1}, v{vML+1}, v{vML+1} quad_perm:[1,0,3,2]{DPP}")
        e(f"v_add_f32_dpp v{vML+1}, v{vML+1}, v{vML+1} quad_perm:[2,3,0,1]{DPP}")
        xrow(vML + 1, "v_add_f32")
        e(f"v_min_u32 v{vML+1}, -2, v{vML+1}")
        e(f"ds_write_b64 v{vt2}, v[{vML}:{vML+1}] offset:{MLX}")
        e(f"v_mov_b32 v{vnmc}, 0")
    for t in range(16): vtile(t, 0, (lambda t=t: softp(2 * t + 2)) if t < 15 else fin_l)
    rotP(0, NP - 4)
    e(f"s_mov_b32 s{sCnt}, {KV}")
    if dV:
        st["dd"] = [int(x, 36) for x in str(dV)]
    st["C"] = min(st["C"], st["I"] - max(st.get("dd", d1)) + 1)
    LV = st["I"] - st["cons"]; C0 = st["C"] - st["cons"]
    c("---- V phase, steady state")
    lab("L_vloop")
    for t in range(16, 32): vtile(t, 4)
    assert st["I"] - st["cons"] == LV and st["C"] - st["cons"] >= C0
    rotP(0, NP - 8)
    if stamps == 2:
        e(f"s_memrealtime s[{sSt}:{sSt+1}]"); e(f"s_sub_u32 s{sT}, {12+KV}, s{sCnt}"); e("s_waitcnt lgkmcnt(0)")
        e(f"s_mov_b32 m0, s{sT}"); e(f"v_writelane_b32 v{vSt}, s{sSt}, m0")
    e(f"s_sub_u32 s{sCnt}, s{sCnt}, 1"); e(f"s_cmp_lg_u32 s{sCnt}, 0"); e("s_cbranch_scc1 L_vloop")
    for k in ("I", "C", "cons"): st[k] += 16 * (KV - 1)
    c("---- V phase, end: the window opens up to the whole ring")
    st["deep"] = True
    KD = 6 - KV
    if dloop and KD >= 2:
        assert st["I"] - st["cons"] == NSLOT
        e(f"s_mov_b32 s{sCnt}, {KD}")
        st["C"] = st["cons"]
        t0 = 16 * (KV + 1)
        lab("L_dloop")
        for t in range(t0, t0 + 16): vtile(t, 4 * (KV + 1))
        rotP(0, 4 * KD)
        e(f"s_sub_u32 s{sCnt}, s{sCnt}, 1"); e(f"s_cmp_lg_u32 s{sCnt}, 0"); e("s_cbranch_scc1 L_dloop")
        for k in ("I", "C", "cons"): st[k] += 16 * (KD - 1)
        if xch:
            c("the helper published the two waves' merge factors and the hand-off mode long ago (poison until then)")
            lab("L_beta")
            e(f"ds_read_b64 v[{vAL}:{vAL+1}], v{vMW} offset:{BX}")
            e(f"ds_read_b32 v{vt}, v{vnmc} offset:{FLAG}")
            e("s_waitcnt lgkmcnt(0)")
            e(f"v_cmp_eq_u32 vcc, -1, v{vAL}"); e("s_cbranch_vccnz L_beta")
            e(f"v_readfirstlane_b32 s{sFast}, v{vt}")
        for t in range(NT - 16, NT - xch): vtile(t, NP - 4)
    else:
        for t in range(16 * (KV + 1), NT): vtile(t, 4 * (KV + 1))
    assert st["I"] == NTOT
    if xch:
        c("---- last tile; wave w keeps accumulator half w, hands the other half to its partner through LDS")
        src = slot(NTOT - 1); X = vX + 2
        e(f"s_cmp_eq_u32 s{sWave}, 0"); e("s_cbranch_scc1 L_x0")
        for w in (1, 0):
            if w == 0: lab("L_x0")
            keep = vA + 4 * w; send = vA + 4 * (1 - w)
            e(f"s_cmp_eq_u32 s{sFast}, 0")
            e("s_waitcnt vmcnt(0)")
            for a in (send, keep):
                o = src + (2 if a == vA + 4 else 0)
                e(f"v_mfma_f32_16x16x16_bf16 v[{a}:{a+3}], v[{o}:{o+1}], v[{X}:{X+1}], v[{a}:{a+3}]")
            stamp_async(1)
            e(f"ds_write_b128 v{vLW}, v[{send}:{send+3}]")
            own = "op_sel_hi:[1,0]" if w == 0 else "op_sel:[0,1] op_sel_hi:[1,1]"
            oth = "op_sel_hi:[1,0,1]" if w == 1 else "op_sel:[0,1,0] op_sel_hi:[1,1,1]"
            for r in (0, 2): e(f"v_pk_mul_f32 v[{keep+r}:{keep+r+1}], v[{keep+r}:{keep+r+1}], v[{vAL}:{vAL+1}] {own}")
            e("s_waitcnt lgkmcnt(0)"); e("s_barrier")
            e(f"ds_read_b128 v[{vD}:{vD+3}], v{vLR}")
            stamp_async(2)
            e("s_waitcnt lgkmcnt(0)")
            for r in (0, 2): e(f"v_pk_fma_f32 v[{vD+r}:{vD+r+1}], v[{vD+r}:{vD+r+1}], v[{vAL}:{vAL+1}], v[{keep+r}:{keep+r+1}] {oth}")
            if w == 1:
                e(f"v_cvt_pk_bf16_f32 v{vD}, v{vD}, v{vD+1}"); e(f"v_cvt_pk_bf16_f32 v{vD+1}, v{vD+2}, v{vD+3}")
                e(f"v_min_u32 v{vD}, -2, v{vD}"); e(f"v_min_u32 v{vD+1}, -2, v{vD+1}")
                e("s_cbranch_scc1 L_slowO")
                if nohelp < 2: e(f"global_store_dwordx2 v{vOut}, v[{vD}:{vD+1}], s[20:21]")
                e("s_branch L_sdone" if stamps else "s_endpgm")
    else:
        stamp_async(1)
        c("---- combine the two waves through LDS and publish this workgroup's partial (bf16)")
        e(f"ds_write2st64_b64 v{vLW}, v[{vA}:{vA+1}], v[{vA+2}:{vA+3}] offset0:0 offset1:1")
        e(f"ds_write2st64_b64 v{vLW}, v[{vA+4}:{vA+5}], v[{vA+6}:{vA+7}] offset0:2 offset1:3")
        e("s_waitcnt lgkmcnt(0)"); e("s_barrier")
        e(f"ds_read_b32 v{vt}, v{vnmc} offset:{FLAG}")
        e(f"ds_read_b64 v[{vX}:{vX+1}], v{vMW} offset:{BX}")
        e(f"ds_read2st64_b64 v[{vD}:{vD+3}], v{vLR} offset0:0 offset1:1")
        e(f"ds_read2st64_b64 v[{vD+4}:{vD+7}], v{vLR} offset0:4 offset1:5")
        stamp_async(2)
        e(f"s_waitcnt lgkmcnt({0 if stamps else 1})")
        e(f"v_readfirstlane_b32 s{sT}, v{vt}")
        e(f"v_pk_mul_f32 v[{vD}:{vD+1}], v[{vD}:{vD+1}], v[{vX}:{vX+1}] op_sel_hi:[1,0]")
        e(f"v_pk_mul_f32 v[{vD+2}:{vD+3}], v[{vD+2}:{vD+3}], v[{vX}:{vX+1}] op_sel_hi:[1,0]")
        e("s_waitcnt lgkmcnt(0)")
        e(f"v_pk_fma_f32 v[{vD}:{vD+1}], v[{vD+4}:{vD+5}], v[{vX}:{vX+1}], v[{vD}:{vD+1}] op_sel:[0,1,0] op_sel_hi:[1,1,1]")
        e(f"v_pk_fma_f32 v[{vD+2}:{vD+3}], v[{vD+6}:{vD+7}], v[{vX}:{vX+1}], v[{vD+2}:{vD+3}] op_sel:[0,1,0] op_sel_hi:[1,1,1]")
        e(f"s_cmp_eq_u32 s{sT}, 0")

    e(f"v_cvt_pk_bf16_f32 v{vD}, v{vD}, v{vD+1}"); e(f"v_cvt_pk_bf16_f32 v{vD+1}, v{vD+2}, v{vD+3}")
    e(f"v_min_u32 v{vD}, -2, v{vD}"); e(f"v_min_u32 v{vD+1}, -2, v{vD+1}")
    ost = f"global_store_dwordx2 v{vOut}, v[{vD}:{vD+1}], s[20:21]"
    e("s_cbranch_scc1 L_slowO")
    if nohelp < 2: e(ost)
    lab("L_sdone")
    if stamps:
        stamp(58)
        e(f"v_writelane_b32 v{vSt}, s{sSt+2}, 56"); e(f"v_writelane_b32 v{vSt}, s{sSt+4}, 57")
        e("s_branch L_fin")
    else: e("s_endpgm")
    lab("L_slowO")
    e(ost + " sc1")
    e("s_waitcnt vmcnt(0)"); e("s_barrier")
    e("s_branch L_sdone" if stamps else "s_endpgm")

    c("================ helper wave ================")
    lab("L_helper")
    hP = vR; hKT = vR + 4; hVT = vR + 8; hMask = vR + 12; hTa = vR + 14; hO = vR + 22; hML = vR + 30; hG = vR + 32; hCnt = vR + 34
    vCO, vCM, vOA = vK, vV, vM0
    if hprio: e(f"s_setprio {hprio}")
    if pf:
        c("read this kernel's own code once (one dword per 128 B) so that instruction fetch finds it in L2")
        e(f"s_getpc_b64 s[{sT}:{sT+1}]")
        lab("L_pfbase")
        e(f"s_sub_u32 s{sT}, s{sT}, L_pfbase-{KN}_kernel"); e(f"s_subb_u32 s{sT+1}, s{sT+1}, 0")
        e(f"v_lshlrev_b32 v{hO}, 7, v{vLane}")
        e(f"v_min_u32 v{hO}, L_codeend-4-{KN}_kernel, v{hO}")
        e(f"v_mov_b32 v{hO+1}, s{sT+1}")
        e(f"v_add_co_u32 v{hO}, vcc, s{sT}, v{hO}")
        e(f"v_addc_co_u32 v{hO+1}, vcc, 0, v{hO+1}, vcc")
        e(f"global_load_dword v{hO+2}, v[{hO}:{hO+1}], off")
    e(f"s_lshl_b32 s{sRec}, s{sKV}, 5"); e(f"s_add_u32 s{sRec}, s{sRec}, s{sSplit}")
    e(f"s_mov_b32 s{sC}, {f32(CC)}"); e(f"s_mov_b32 s{sNC}, {f32(-CC)}")
    e(f"v_lshlrev_b32 v{vA}, 4, v{vLane}")
    e(f"s_lshl_b32 s{sT}, s{sRec}, 10"); e(f"v_add_u32 v{vLW}, s{sT}, v{vA}")
    e(f"s_lshl_b32 s{sT}, s{sRec}, 5"); e(f"s_add_u32 s{sT}, s{sT}, {MLB}")
    e(f"v_lshl_add_u32 v{vOut}, v{vLane}, 1, s{sT}")
    for r in range(0, 4, 2): e(f"v_mov_b64 v[{hP+r}:{hP+r+1}], -1")
    e(f"ds_write_b128 v{vA}, v[{hP}:{hP+3}] offset:{MLX}")
    if xch: e(f"ds_write_b128 v{vA}, v[{hP}:{hP+3}] offset:{BX}")
    c("this workgroup reduces output slice c = split: h = c&3, g = (c>>2)&3, w = c>>4; lane = (producer l>>1, which l&1)")
    e(f"s_lshl_b32 s{sT}, s{sKV}, 8")
    e(f"v_add_u32 v{vt2}, s{sT}, v{vt2}")
    e(f"v_and_b32 v{vt}, 1, v{vLane}")
    e(f"s_bfe_u32 s{sT2}, s{sSplit}, 0x20002"); e(f"s_lshl_b32 s{sT2}, s{sT2}, 6"); e(f"s_add_u32 s{sT}, s{sT}, s{sT2}")
    e(f"s_lshr_b32 s{sT2}, s{sSplit}, 4"); e(f"s_lshl_b32 s{sT2}, s{sT2}, 3"); e(f"s_add_u32 s{sT}, s{sT}, s{sT2}")
    e(f"v_lshl_add_u32 v{vLR}, v{vt}, 2, s{sT}")
    e(f"v_mov_b32 v{vnmc}, 0")
    e("s_waitcnt lgkmcnt(0)")
    e("s_barrier")
    if nohelp:
        e(f"v_mov_b32 v{vX}, 1.0"); e(f"v_mov_b32 v{vX+1}, 1.0"); e(f"v_lshlrev_b32 v{vt2}, 3, v{vLane}")
        e(f"ds_write_b32 v{vnmc}, v{vX} offset:{FLAG}"); e(f"ds_write_b64 v{vt2}, v[{vX}:{vX+1}] offset:{BX}")
        e("s_waitcnt lgkmcnt(0)"); e("s_barrier"); e("s_branch L_fin")
    if late:
        e(f"s_cmp_lg_u32 s{sSplit}, 5"); e("s_cbranch_scc1 L_notlate")
        for _ in range(late): e("s_sleep 127")
        lab("L_notlate")
    c("poison this workgroup's hand-off slots (plain stores: they stay in this XCD's L2)")
    e(f"global_store_dwordx4 v{vLW}, v[{hP}:{hP+3}], s[20:21]")
    e("s_mov_b64 exec, 0x1111")
    e(f"global_store_dwordx2 v{vOut}, v[{hP}:{hP+1}], s[20:21]")
    e("s_mov_b64 exec, -1")
    if amp2:
        e(f"s_cmp_lg_u32 s{sSplit}, 0"); e("s_cbranch_scc1 L_nopub")
        e(f"s_lshl_b32 s{sT}, s{sKV}, 2"); e(f"s_add_u32 s{sT}, s{sT}, 0x2000000"); e(f"v_mov_b32 v{hO}, s{sT}"); e(f"v_mov_b32 v{hO+1}, s56")
        e("s_mov_b64 exec, 1"); e(f"global_store_dword v{hO}, v{hO+1}, s[20:21] sc1"); e("s_mov_b64 exec, -1")
        lab("L_nopub")
    e(f"global_load_dwordx4 v[{vQ}:{vQ+3}], v{vmx}, s[4:5]")
    e(f"global_load_dwordx4 v[{hKT}:{hKT+3}], v{vt2}, s[10:11]")
    for k in range(4): e(f"global_load_dword v{hVT+k}, v{vLR}, s[12:13] offset:{32*(k>>1) + 16*(k&1)}")
    e(f"global_load_ushort v{hMask}, v{vnmc}, s[14:15]")
    e(f"s_and_b32 s{sMT}, s{sSplit}, 3")
    e(f"s_mul_i32 s{sT}, s{sKV}, 768"); e(f"s_lshl_b32 s{sT2}, s{sMT}, 8"); e(f"s_add_u32 s{sT}, s{sT}, s{sT2}"); e(f"v_add_u32 v{vOA}, s{sT}, v{vLR}")
    e(f"v_and_b32 v{vmx}, 48, v{vLane}"); e(f"v_add_u32 v{vOA}, v{vmx}, v{vOA}")
    e(f"v_lshrrev_b32 v{vmx}, 1, v{vLane}")
    e(f"s_lshl_b32 s{sT}, s{sKV}, 10"); e(f"s_lshl_b32 s{sT2}, s{sMT}, 3"); e(f"s_add_u32 s{sT}, s{sT}, s{sT2}"); e(f"s_add_u32 s{sT}, s{sT}, {MLB}")
    e(f"v_lshl_add_u32 v{vCM}, v{vmx}, 5, s{sT}")
    e(f"s_lshl_b32 s{sT}, s{sKV}, 15"); e(f"s_lshl_b32 s{sT2}, s{sMT}, 5"); e(f"s_add_u32 s{sT}, s{sT}, s{sT2}")
    e(f"s_bfe_u32 s{sT2}, s{sSplit}, 0x20002"); e(f"s_lshl_b32 s{sT2}, s{sT2}, 7"); e(f"s_add_u32 s{sT}, s{sT}, s{sT2}")
    e(f"s_lshr_b32 s{sT2}, s{sSplit}, 4"); e(f"s_lshl_b32 s{sT2}, s{sT2}, 9"); e(f"s_add_u32 s{sT}, s{sT}, s{sT2}")
    e(f"v_lshl_add_u32 v{vCO}, v{vmx}, 10, s{sT}"); e(f"v_lshl_add_u32 v{vCO}, v{vt}, 4, v{vCO}")
    c("arm: once the poison is in L2, d_debug byte [kv*32+split] = 0x80 | XCC id (plain store)")
    e(f"s_getreg_b32 s{sInc}, hwreg(HW_REG_XCC_ID, 0, 4)")
    e(f"s_or_b32 s{sInc}, s{sInc}, 0x80")
    e(f"s_lshl_b32 s{sT}, s{sKV}, 5")
    e(f"v_mov_b32 v{vt}, s{sRec}"); e(f"v_mov_b32 v{vt2}, s{sInc}")
    e(f"v_and_b32 v{vMW}, 7, v{vLane}"); e(f"v_lshl_add_u32 v{vMW}, v{vMW}, 2, s{sT}")
    e(f"s_mul_i32 s{sInc}, s{sInc}, 0x01010101"); e(f"s_lshl_b32 s{sMT}, s{sMT}, 2")
    e("s_waitcnt vmcnt(0)")
    e("s_mov_b64 exec, 1")
    e(f"global_store_byte v{vt}, v{vt2}, s[18:19]")
    e("s_mov_b64 exec, -1")
    c("tree token: raw score q.k_tree + (1-mask)*(-1e9/scale) and its v_tree slice (lanes 0,1 only)")
    qk(vD, hKT)
    e(f"v_lshlrev_b32 v{hMask}, 16, v{hMask}"); e(f"v_sub_f32 v{hMask}, 1.0, v{hMask}"); e(f"s_mov_b32 s{sT}, {f32(BIG)}")
    e(f"v_cmp_gt_u32 vcc, 2, v{vLane}")
    for k in range(8):
        if k & 4: e(f"v_and_b32 v{hTa+k}, 0xffff0000, v{hVT + (k & 3)}")
        else: e(f"v_lshlrev_b32 v{hTa+k}, 16, v{hVT + (k & 3)}")
    for k in range(8): e(f"v_cndmask_b32 v{hTa+k}, 0, v{hTa+k}, vcc")
    e(f"v_mov_b32_dpp v{vT}, v{vD} quad_perm:[0,0,0,0]{DPP}")
    for u in range(1, 4): e(f"v_add_f32_dpp v{vT}, v{vD+u}, v{vT} quad_perm:[{u},{u},{u},{u}]{DPP}")
    e(f"v_fma_f32 v{vT}, v{hMask}, s{sT}, v{vT}")
    e(f"v_readlane_b32 s{sMT}, v{vT}, s{sMT}")
    e(f"v_lshlrev_b32 v{vt2}, 3, v{vLane}")
    e(f"s_mov_b32 s{sCnt}, {spin}")
    def mlread(): e(f"ds_read2st64_b64 v[{vD}:{vD+3}], v{vt2} offset0:{MLX//512} offset1:{MLX//512+1}")
    def mlcheck():
        e(f"v_max3_u32 v{vt}, v{vD}, v{vD+1}, v{vD+2}"); e(f"v_max_u32 v{vt}, v{vt}, v{vD+3}")
        e(f"v_cmp_eq_u32 vcc, -1, v{vt}")
    c("FAST iff all 32 workgroups of this head have armed on this XCD; still open when our (m,l) are ready -> SLOW")
    lab("L_armchk")
    e(f"s_sleep {asleep}")
    e(f"global_load_dword v{hCnt}, v{vMW}, s[18:19] sc1")
    mlread()
    e(f"s_mov_b32 s{sFast}, {0 if force == 'slow' else 1}")
    e("s_waitcnt vmcnt(0) lgkmcnt(0)")
    e(f"v_and_b32 v{hCnt}, 0xbfbfbfbf, v{hCnt}"); e(f"v_cmp_ne_u32 vcc, s{sInc}, v{hCnt}")
    e("s_cbranch_vccz L_armed")
    mlcheck()
    e("s_cbranch_vccnz L_armchk")
    e(f"s_mov_b32 s{sFast}, 0")
    lab("L_armed")
    e(f"v_mov_b32 v{vt}, s{sFast}"); e(f"ds_write_b32 v{vnmc}, v{vt} offset:{FLAG}")
    c("wait for the streaming waves' (m,l), merge them, publish (M,L)")
    lab("L_ldspoll")
    e(f"s_sleep {lsleep}")
    mlread()
    e("s_waitcnt lgkmcnt(0)")
    mlcheck()
    e("s_cbranch_vccnz L_ldspoll")
    e(f"v_max_f32 v{vML}, v{vD}, v{vD+2}")
    e(f"v_mul_f32 v{vnmc}, s{sNC}, v{vML}")
    for j in range(2): e(f"v_fma_f32 v{vX+j}, v{vD+2*j}, s{sC}, v{vnmc}")
    for j in range(2): e(f"v_exp_f32 v{vX+j}, v{vX+j}")
    e(f"s_cmp_eq_u32 s{sFast}, 0")
    e(f"v_mul_f32 v{vML+1}, v{vX}, v{vD+1}")
    e(f"v_fma_f32 v{vML+1}, v{vX+1}, v{vD+3}, v{vML+1}")
    if xch: e(f"v_min_u32 v{vX}, -2, v{vX}")
    e(f"ds_write_b64 v{vt2}, v[{vX}:{vX+1}] offset:{BX}")
    e(f"v_min_u32 v{vML+1}, -2, v{vML+1}")
    e("s_mov_b64 exec, 0x1111")
    e("s_cbranch_scc1 L_slowM")
    e(f"global_store_dwordx2 v{vOut}, v[{vML}:{vML+1}], s[20:21]")
    lab("L_mgo")
    e("s_mov_b64 exec, -1")
    c("gather the 32 (M,L) of this head and turn them into final weights")
    lab("L_pollM")
    e(f"s_sleep {msleep}")
    e(f"global_load_dwordx2 v[{hML}:{hML+1}], v{vCM}, s[20:21] sc1")
    e(f"s_sub_u32 s{sCnt}, s{sCnt}, 1"); e("s_cbranch_scc1 L_mto")
    e("s_waitcnt vmcnt(0)")
    e(f"v_max_u32 v{vmx}, v{hML}, v{hML+1}"); e(f"v_cmp_eq_u32 vcc, -1, v{vmx}")
    e("s_cbranch_vccnz L_pollM")
    lab("L_mto")
    stamp_async(1)
    e(f"v_max_f32 v{vmx}, s{sMT}, v{hML}")
    xrow(vmx, "v_max_f32")
    for ctl in ("row_ror:8", "row_ror:4", "quad_perm:[2,3,0,1]"): e(f"v_max_f32_dpp v{vmx}, v{vmx}, v{vmx} {ctl}{DPP}")
    e(f"v_sub_f32 v{hG}, v{hML}, v{vmx}"); e(f"v_sub_f32 v{vAL}, s{sMT}, v{vmx}")
    e(f"v_mul_f32 v{hG}, s{sC}, v{hG}"); e(f"v_mul_f32 v{vAL}, s{sC}, v{vAL}")
    e(f"v_exp_f32 v{hG}, v{hG}"); e(f"v_exp_f32 v{vAL}, v{vAL}")
    e(f"v_mul_f32 v{vmx}, v{hG}, v{hML+1}")
    xrow(vmx, "v_add_f32")
    for ctl in ("row_ror:8", "row_ror:4", "quad_perm:[2,3,0,1]"): e(f"v_add_f32_dpp v{vmx}, v{vmx}, v{vmx} {ctl}{DPP}")
    e(f"v_add_f32 v{vmx}, v{vmx}, v{vAL}"); e(f"v_rcp_f32 v{vmx}, v{vmx}")
    e(f"v_mul_f32 v{hG}, v{hG}, v{vmx}"); e(f"v_mul_f32 v{vAL}, v{vAL}, v{vmx}")
    for r in range(0, 8, 2): e(f"v_pk_mul_f32 v[{hTa+r}:{hTa+r+1}], v[{hTa+r}:{hTa+r+1}], v[{vAL}:{vAL+1}] op_sel_hi:[1,0]")
    e(f"s_mov_b32 s{sCnt}, {spin}")
    e(f"s_mov_b32 s{sOdd}, 0x00030003"); e(f"s_mov_b32 s{sOdd+1}, 0x00030003")
    e(f"s_cmp_eq_u32 s{sFast}, 0"); e("s_cbranch_scc1 L_pollO")
    e("s_waitcnt lgkmcnt(0)"); e("s_barrier")
    if nopoll: e("s_branch L_fin")
    def oload(): e(f"global_load_dwordx4 v[{hO}:{hO+3}], v{vCO}, s[20:21] sc1")
    def ocheck():
        e(f"v_max3_u32 v{vt}, v{hO}, v{hO+1}, v{hO+2}"); e(f"v_max_u32 v{vt}, v{vt}, v{hO+3}")
        e(f"v_cmp_eq_u32 vcc, -1, v{vt}")
    c("gather the partials: only lanes still holding poison keep loading; the last few are polled back to back")
    lab("L_pollO")
    oload()
    if osleep: e(f"s_sleep {osleep}")
    e(f"s_sub_u32 s{sCnt}, s{sCnt}, 1"); e("s_cbranch_scc1 L_fin")
    e("s_waitcnt vmcnt(0)")
    ocheck()
    e(f"s_bcnt1_i32_b64 s{sT2}, vcc"); e("s_cbranch_scc0 L_done")
    e("s_mov_b64 exec, vcc")
    e(f"s_cmp_gt_u32 s{sT2}, {thr}"); e("s_cbranch_scc1 L_pollO")
    lab("L_pollO2")
    oload()
    e(f"s_sub_u32 s{sCnt}, s{sCnt}, 1"); e("s_cbranch_scc1 L_fin")
    e(f"s_waitcnt vmcnt({pdepth-1})")
    ocheck()
    e("s_and_b64 exec, exec, vcc"); e("s_cbranch_scc1 L_pollO2")
    lab("L_done")
    e("s_mov_b64 exec, -1")
    stamp_async(2)
    R_ = hTa; U_ = vD
    for k in range(4):
        e(f"v_lshlrev_b32 v{U_+2*k}, 16, v{hO+k}"); e(f"v_and_b32 v{U_+2*k+1}, 0xffff0000, v{hO+k}")
    for r in range(0, 8, 2): e(f"v_pk_fma_f32 v[{R_+r}:{R_+r+1}], v[{U_+r}:{U_+r+1}], v[{hG}:{hG+1}], v[{hTa+r}:{hTa+r+1}] op_sel_hi:[1,0,1]")
    for r in (0, 1, 4, 5): e(f"v_permlane32_swap_b32 v{R_+r}, v{R_+r+2}")
    for r in (0, 4): e(f"v_pk_add_f32 v[{R_+r}:{R_+r+1}], v[{R_+r}:{R_+r+1}], v[{R_+r+2}:{R_+r+3}]")
    e(f"v_permlane16_swap_b32 v{R_}, v{R_+1}"); e(f"v_permlane16_swap_b32 v{R_+4}, v{R_+5}")
    e(f"v_add_f32 v{R_}, v{R_}, v{R_+1}"); e(f"v_add_f32 v{R_+4}, v{R_+4}, v{R_+5}")
    for ctl in ("row_ror:8", "row_ror:4", "quad_perm:[2,3,0,1]"):
        for x in (R_, R_ + 4): e(f"v_add_f32_dpp v{x}, v{x}, v{x} {ctl}{DPP}")
    e(f"s_mov_b64 exec, s[{sOdd}:{sOdd+1}]")
    e(f"v_cvt_pk_bf16_f32 v{R_}, v{R_}, v{R_+4}")
    e(f"global_store_dword v{vOA}, v{R_}, s[16:17]")
    if stamps:
        e("s_mov_b64 exec, -1")
        stamp(61); e("s_waitcnt vmcnt(0)"); stamp(62)
        e(f"v_writelane_b32 v{vSt}, s{sSt+2}, 59"); e(f"v_writelane_b32 v{vSt}, s{sSt+4}, 60")
    lab("L_fin")
    if amp:
        e("s_waitcnt vmcnt(0)"); e("s_memrealtime s[58:59]"); e("s_waitcnt lgkmcnt(0)")
        if amp2:
            e("s_mov_b64 exec, -1")
            e(f"v_and_b32 v{vt}, 7, v{vLane}"); e(f"v_lshlrev_b32 v{vt}, 2, v{vt}"); e(f"v_add_u32 v{vt}, 0x2000000, v{vt}")
            e(f"global_load_dword v{vt}, v{vt}, s[20:21] sc1"); e("s_waitcnt vmcnt(0)")
            e(f"v_sub_u32 v{vt}, s58, v{vt}")
            for k in range(8):
                e(f"v_readlane_b32 s61, v{vt}, {k}"); e("s_nop 1")
                e("s_mov_b32 s60, s61" if k == 0 else "s_max_u32 s60, s60, s61")
            e("s_min_u32 s60, s60, 4000"); e("s_sub_u32 s56, s58, s60")
        e("s_sub_u32 s60, s58, s56"); e(f"s_mul_i32 s60, s60, {amp}"); e("s_add_u32 s60, s60, 6000")
        lab("L_amp")
        e("s_memrealtime s[58:59]"); e("s_waitcnt lgkmcnt(0)"); e("s_sub_u32 s61, s58, s56"); e("s_cmp_lt_u32 s61, s60"); e("s_cbranch_scc1 L_amp")
    if stamps:
        e("s_mov_b64 exec, -1")
        e(f"s_mul_i32 s{sT}, s2, {W+1}"); e(f"s_add_u32 s{sT}, s{sT}, s{sWave}"); e(f"s_lshl_b32 s{sT}, s{sT}, 8")
        e("s_add_u32 s20, s20, 0x8000000"); e("s_addc_u32 s21, s21, 0")
        e(f"v_lshl_add_u32 v{vt}, v{vLane}, 2, s{sT}")
        e(f"global_store_dword v{vt}, v{vSt}, s[20:21]")
    lab("L_end")
    e("s_endpgm")
    c("SLOW: everything is written through; bit 6 of our d_debug byte (memory-side atomic) says so; wait for all 32")
    lab("L_slowM")
    e(f"global_store_dwordx2 v{vOut}, v[{vML}:{vML+1}], s[20:21] sc1")
    e("s_mov_b64 exec, -1")
    e("s_waitcnt lgkmcnt(0)"); e("s_barrier")
    e(f"s_and_b32 s{sT}, s{sRec}, 0xfc")
    e(f"s_and_b32 s{sT2}, s{sSplit}, 3"); e(f"s_lshl_b32 s{sT2}, s{sT2}, 3"); e(f"s_lshl_b32 s{sT2}, 0x40, s{sT2}")
    e(f"v_mov_b32 v{vt}, s{sT}"); e(f"v_mov_b32 v{vt2}, s{sT2}"); e(f"v_mov_b32 v{vnmc}, 0")
    e("s_waitcnt vmcnt(0)"); e("s_barrier")
    e("s_mov_b64 exec, 1")
    e(f"global_atomic_or v{vt}, v{vt2}, s[18:19]")
    lab("L_slowwait")
    e("s_mov_b64 exec, 0xff")
    e(f"global_atomic_or v{vmx}, v{vMW}, v{vnmc}, s[18:19] sc0")
    e(f"global_load_dword v{hCnt}, v{vMW}, s[18:19] sc1")
    e("s_waitcnt vmcnt(0)")
    e(f"v_and_b32 v{vmx}, 0x40404040, v{vmx}"); e(f"v_cmp_ne_u32 vcc, 0x40404040, v{vmx}")
    e("s_cbranch_vccz L_mgo")
    if force != 'slow':
        e(f"v_and_b32 v{hCnt}, 0xbfbfbfbf, v{hCnt}"); e(f"v_cmp_ne_u32 vcc, s{sInc}, v{hCnt}")
        e("s_cbranch_vccz L_mgo")
    e("s_sleep 32")
    e(f"s_sub_u32 s{sCnt}, s{sCnt}, 1"); e("s_cbranch_scc0 L_slowwait")
    e("s_branch L_fin")
    lab("L_codeend")
    L.append('.section .rodata,"a"'); L.append(".p2align 6"); L.append(f".amdhsa_kernel {KN}_kernel")
    L.append(f"  .amdhsa_next_free_vgpr {nv}"); L.append("  .amdhsa_next_free_sgpr 64"); L.append(f"  .amdhsa_accum_offset {(nv+3)//4*4}")
    L.append("  .amdhsa_group_segment_fixed_size 0"); L.append("  .amdhsa_kernarg_size 72"); L.append("  .amdhsa_user_sgpr_count 2")
    L.append("  .amdhsa_user_sgpr_kernarg_segment_ptr 1"); L.append("  .amdhsa_system_sgpr_workgroup_id_x 1"); L.append(".end_amdhsa_kernel")
    s = "\n".join(L) + "\n"
    s, n = hazard.fix(s)
    pr = hazard.check_branches(s)
    assert not pr, pr
    return s
DOC = """;
;
;       O[h][32g + 8r + e (+4)].
;
;"""
if __name__ == "__main__":
    name = sys.argv[1]; kw = {}
    for a in sys.argv[2:]:
        k, v = a.split("=", 1)
        if k not in ("d1", "dT", "dV"):
            try: v = int(v)
            except ValueError: pass
        if k == "ldflags": v = v.replace("+", " ").replace("none", "")
        kw[k] = v
    open(name if "/" in name else f"build/{name}.s", "w").write(gen(**kw))
```

```python
import sys, struct, math
sys.path.insert(0, "tools")
import hazard
KN = "standalone__tree_speculative_verify_tree_attention_over_candidate_token_tree__decode"
def f32(x): return "0x%08x" % struct.unpack("<I", struct.pack("<f", x))[0]
SCALE = 128 ** -0.5
CC = SCALE * math.log2(math.e)
BIG = -1e9 / SCALE
HDR = open("cdna_kernels/" + KN + ".s.ref").read().split("; Override launch")[0]

def gen(LA=13, d1="a", KV=4, dloop=1, LP=10, stamps=0, ldflags="nt", spin=1 << 20, force="", hprio=0, pdepth=5,
        msleep=4, lsleep=4, asleep=8, osleep=1, pf=36, thr=8, amp=0, amp2=0, doc=0, late=0, lateall=0, xch=1, nofin=0, nopoll=0, nohelp=0, dT='', dV='', qf='', qpos=0, ampx=0, ic=0, icn=4, icgap=256, amph=0, touch=''):
    W = 2; NWG = 256; NT = 128; NTOT = 256; NSLOT = 16; IG = 8; NP = 32
    d1 = [int(x, 36) for x in str(d1)]
    GSTEP = IG * W * 1024; REG = NT * W * 1024
    REC = 1024; MLB = 256 * REC
    MLX, BX, XCH, FLAG = 0, 1024, 2048, 4096
    assert xch
    lds = FLAG + 16
    L = []
    def e(s): L.append("    " + s)
    def c(s):
        if doc: L.append("    ; " + s)
    def lab(s): L.append(s + ":")
    DPP = " row_mask:0xf bank_mask:0xf"
    vK, vV, vM0, vM1 = 1, 2, 3, 4
    vt = 5; vmx = 6; vnmc = 7; vML = 8; vQ = 10; vA = 14; vD = 22; vT = 38; vX = 42; vLs = 46
    vLW = 48; vLR = 49; vMW = 50; vLane = 51; vt2 = 52; vOut = 53; vSt = 54; vAL = 56
    vPF = 55; vC = 57; vP = 58; vR = vP + NP
    nv = vR + 4 * NSLOT
    sWave = 3; sKV = 22; sSplit = 23; sInc = 24; sC = 25; sNC = 26; sCnt = 27; sT = 28; sT2 = 29; sRec = 30; sMT = 31
    sK = 32; sVb = 34; sSt = 40; sOdd = 48; sHi = 50; sFast = 52; sSw = 54
    def stamp(slot):
        if stamps:
            e(f"s_memrealtime s[{sSt}:{sSt+1}]"); e("s_waitcnt lgkmcnt(0)"); e(f"v_writelane_b32 v{vSt}, s{sSt}, {slot}")
    def stamp_async(k):
        if stamps: e(f"s_memrealtime s[{sSt + 2*k}:{sSt + 2*k + 1}]")
    L.append(HDR.rstrip())
    L.append(f"; @launch grid=({NWG},1,1) block=({(W+1)*64},1,1) lds={lds}")
    if doc: L.append(DOC.rstrip())
    L.append('.amdgcn_target "amdgcn-amd-amdhsa--gfx950"')
    L.append(".text"); L.append(f".globl {KN}_kernel"); L.append(".p2align 8"); L.append(f".type {KN}_kernel,@function"); L.append(f"{KN}_kernel:")
    stamp_async(1)
    if amp or ampx: e("s_memrealtime s[56:57]")
    c("The first 256 bytes hold everything up to the first loads: code past them is a cold instruction fetch.")
    c("s[4:5] q  s[6:7] k  s[8:9] v  s[10:11] k_tree  s[12:13] v_tree  s[14:15] mask  s[16:17] out  s[18:19] debug")
    e("s_load_dwordx16 s[4:19], s[0:1], 0")
    if pf:
        c("touch the rest of this kernel's code (loads only) so that instruction fetch finds it in L2")
        e(f"s_getpc_b64 s[{sT}:{sT+1}]")
        e(f"v_mad_u64_u32 v[2:3], vcc, v0, {pf}, s[{sT}:{sT+1}]")
        e(f"global_load_dword v{vPF}, v[2:3], off")
    e(f"s_lshr_b32 s{sSplit}, s2, 3"); e(f"s_cmp_gt_u32 s{sSplit}, 31"); e("s_cbranch_scc1 L_end")
    c("LDS hand-off slots (m,l) and merge factors start out as poison")
    e(f"v_lshlrev_b32 v{vt2}, 3, v0"); e(f"v_mov_b64 v[{vML}:{vML+1}], -1"); e(f"ds_write_b64 v{vt2}, v[{vML}:{vML+1}]")
    e(f"v_readfirstlane_b32 s{sWave}, v0")
    e(f"s_and_b32 s{sKV}, s2, 7")
    c("K/Q tile lane offset / 4: row ((l>>2)&3)*256 + 16-byte chunk (4*(l>>4) + (l&3))")
    e(f"v_and_b32 v{vt}, 3, v0"); e(f"v_and_b32 v{vC}, 48, v0"); e(f"v_lshl_or_b32 v{vC}, v{vt}, 2, v{vC}")
    e(f"v_and_b32 v{vt}, 12, v0"); e(f"v_lshl_or_b32 v{vC}, v{vt}, 4, v{vC}")
    e(f"s_lshl_b32 s{sRec}, s{sKV}, 5"); e(f"s_add_u32 s{sRec}, s{sRec}, s{sSplit}")
    e(f"s_lshl_b32 s{sT}, s{sRec}, 18")
    e(f"s_lshl_b32 s{sT2}, s{sKV}, 10"); e(f"v_lshl_add_u32 v{vmx}, v{vC}, 2, s{sT2}")
    e(f"s_add_u32 s{sT2}, s{sWave}, 32"); e(f"s_lshl_b32 s{sT2}, s{sT2}, 7"); e(f"v_lshl_add_u32 v{vK}, v{vC}, 2, s{sT2}")
    if lateall:
        e(f"s_and_b32 s{sCnt}, s{sSplit}, 7"); e(f"s_cmp_lg_u32 s{sCnt}, 3"); e("s_cbranch_scc1 L_notlate2")
        for _ in range(lateall): e("s_sleep 127")
        lab("L_notlate2")
    e("s_waitcnt lgkmcnt(0)")
    stamp_async(2)
    if ampx == 1: e("s_memrealtime s[58:59]")
    e(f"s_add_u32 s{sK}, s6, s{sT}"); e(f"s_addc_u32 s{sK+1}, s7, 0")
    e(f"s_bitcmp1_b32 s{sWave}, 7"); e("s_cbranch_scc1 L_bar")
    st = dict(I=0, C=0, cons=0, kloop=False, deep=False)
    def slot(n): return vR + 4 * (n % NSLOT)
    def issue():
        n = st["I"]; reg = slot(n)
        if n % 16 == 0 and st["kloop"]:
            c("last K iteration (SCC=1): the load stream moves on from K to V")
            e(f"s_cselect_b64 s[{sK}:{sK+1}], s[{sVb}:{sVb+1}], s[{sK}:{sK+1}]"); e(f"s_cselect_b64 s[{sSw}:{sSw+1}], -1, 0")
            e(f"v_cndmask_b32 v{vK}, v{vK}, v{vV}, s[{sSw}:{sSw+1}]")
        e(f"global_load_dwordx4 v[{reg}:{reg+3}], v{vK}, s[{sK}:{sK+1}] offset:{(n % 8)*1024 - 4096} {ldflags}")
        if n % IG == IG - 1 and n != NTOT - 1: e(f"v_add_u32 v{vK}, {GSTEP}, v{vK}")
        st["I"] += 1
    def needdata(n):
        if st["C"] < n + 1:
            e(f"s_waitcnt vmcnt({st['I'] - n - 1})"); st["C"] = n + 1
    def gate():
        if st["I"] >= min(NTOT, st["cons"] + NSLOT): return
        if not st["deep"]:
            dd = st.get("dd", d1)
            w = dd[st["I"] % len(dd)]
            if st["C"] < st["I"] - w + 1:
                e(f"s_waitcnt vmcnt({w-1})"); st["C"] = st["I"] - w + 1
            issue()
        else:
            while st["I"] < min(NTOT, st["cons"] + NSLOT): issue()
    for n in range(LP):
        if n == qpos and qf != "none": e(f"global_load_dwordx4 v[{vQ}:{vQ+3}], v{vmx}, s[4:5] {qf}")
        issue()
        if ampx == 10 + n + 1: e("s_memrealtime s[58:59]")
    lab("L_bar")
    e("s_barrier")
    e("s_cbranch_scc1 L_helper")
    c("================ streaming waves ================")
    while st["I"] < LA: issue()
    if ampx == 2: e("s_memrealtime s[58:59]")
    e("s_load_dwordx2 s[20:21], s[0:1], 64")
    e(f"v_and_b32 v{vLane}, 63, v0")
    e(f"s_add_u32 s{sVb}, s8, s{sT}"); e(f"s_addc_u32 s{sVb+1}, s9, 0")
    e(f"v_lshl_add_u32 v{vV}, v{vLane}, 4, s{sT2}")
    e(f"s_mov_b32 s{sC}, {f32(CC)}"); e(f"s_mov_b32 s{sNC}, {f32(-CC)}")
    e(f"s_mov_b32 s{sOdd}, 0xaaaaaaaa"); e(f"s_mov_b32 s{sOdd+1}, 0xaaaaaaaa"); e(f"s_mov_b32 s{sHi}, 0xcccccccc"); e(f"s_mov_b32 s{sHi+1}, 0xcccccccc")
    c("per-lane masks that drop a bf16 weight into k-slot (l&3) of the P operand")
    e(f"v_and_b32 v{vt}, 1, v{vLane}"); e(f"v_lshlrev_b32 v{vt}, 4, v{vt}"); e(f"v_mov_b32 v{vmx}, 0xffff"); e(f"v_lshlrev_b32 v{vt}, v{vt}, v{vmx}")
    e(f"v_bfe_i32 v{vmx}, v{vLane}, 1, 1")
    e(f"v_and_b32 v{vM1}, v{vmx}, v{vt}"); e(f"v_xor_b32 v{vM0}, v{vM1}, v{vt}")
    e(f"v_lshlrev_b32 v{vMW}, 3, v{vLane}")
    e(f"v_lshlrev_b32 v{vLW}, 4, v0"); e(f"v_xor_b32 v{vLR}, 0x400, v{vLW}")
    e(f"s_lshl_b32 s{sT}, s{sRec}, 10"); e(f"v_add_u32 v{vOut}, s{sT}, v{vt2}")
    for r in range(0, 8, 2): e(f"v_mov_b64 v[{vA+r}:{vA+r+1}], 0")
    e(f"v_mov_b32 v{vmx}, 0xff800000"); e(f"s_mov_b32 s{sCnt}, 8")
    if stamps:
        e(f"v_mov_b32 v{vSt}, 0")
        e(f"s_getreg_b32 s{sT}, hwreg(HW_REG_XCC_ID)"); e(f"s_getreg_b32 s{sT2}, hwreg(HW_REG_HW_ID)")
        e("s_waitcnt lgkmcnt(0)")
        e(f"v_writelane_b32 v{vSt}, s{sT}, 2"); e(f"v_writelane_b32 v{vSt}, s{sT2}, 3")
        e(f"v_writelane_b32 v{vSt}, s{sSt+2}, 0"); e(f"v_writelane_b32 v{vSt}, s{sSt+4}, 1")
    st["C"] = max(0, min(st["C"], LA - max(d1) ))
    def xrow(x, op):
        e(f"v_mov_b32 v{vt}, v{x}")
        e(f"v_permlane32_swap_b32 v{x}, v{vt}"); e(f"{op} v{x}, v{x}, v{vt}")
        e(f"v_mov_b32 v{vt}, v{x}")
        e(f"v_permlane16_swap_b32 v{x}, v{vt}"); e(f"{op} v{x}, v{x}, v{vt}")
    def qk(dst, src): e(f"v_mfma_f32_16x16x32_bf16 v[{dst}:{dst+3}], v[{src}:{src+3}], v[{vQ}:{vQ+3}], 0")
    def rotP(lo, hi):
        for r in range(lo, hi, 2): e(f"v_mov_b64 v[{vP+r}:{vP+r+1}], v[{vP+r+4}:{vP+r+5}]")
    c("---- K phase: 8 iterations x 4 groups x 4 tiles (a tile = 4 positions = one 1 KiB load)")
    st["C"] = 0
    if ampx == 3: e("s_waitcnt vmcnt(9)"); e("s_memrealtime s[58:59]")
    lab("L_kloop")
    e(f"s_cmp_eq_u32 s{sCnt}, 1")
    st["kloop"] = True
    for g in range(4):
        gate()
        needdata(4 * g + 3)
        for t in range(4): qk(vD + 4 * t, slot(4 * g + t))
        st["cons"] = 4 * g + 4
        gate()
        rotP(8 * g, min(8 * g + 8, NP - 4))
        for u in range(4):
            for t in range(4):
                if u == 0: e(f"v_mov_b32_dpp v{vT+t}, v{vD+4*t} quad_perm:[0,0,0,0]{DPP}")
                else: e(f"v_add_f32_dpp v{vT+t}, v{vD+4*t+u}, v{vT+t} quad_perm:[{u},{u},{u},{u}]{DPP}")
            if u == 1: gate()
        e(f"v_cndmask_b32 v{vT}, v{vT}, v{vT+1}, s[{sOdd}:{sOdd+1}]")
        e(f"v_cndmask_b32 v{vT+2}, v{vT+2}, v{vT+3}, s[{sOdd}:{sOdd+1}]")
        dst = [vX, vX + 1, vX + 2, vP + NP - 1][g]
        e(f"v_cndmask_b32 v{dst}, v{vT}, v{vT+2}, s[{sHi}:{sHi+1}]")
        if g == 1: e(f"v_max3_f32 v{vmx}, v{vmx}, v{vX}, v{vX+1}")
        if g == 3:
            e(f"v_max3_f32 v{vmx}, v{vmx}, v{vX+2}, v{vP+NP-1}")
            e(f"v_mov_b64 v[{vP+NP-4}:{vP+NP-3}], v[{vX}:{vX+1}]"); e(f"v_mov_b32 v{vP+NP-2}, v{vX+2}")
        gate()
    st["kloop"] = False
    assert st["I"] == 16 + LA, st
    if stamps == 2:
        e(f"s_memrealtime s[{sSt}:{sSt+1}]"); e(f"s_sub_u32 s{sT}, 12, s{sCnt}"); e("s_waitcnt lgkmcnt(0)")
        e(f"s_mov_b32 m0, s{sT}"); e(f"v_writelane_b32 v{vSt}, s{sSt}, m0")
    e(f"s_sub_u32 s{sCnt}, s{sCnt}, 1"); e(f"s_cmp_lg_u32 s{sCnt}, 0"); e("s_cbranch_scc1 L_kloop")
    for k in ("I", "C", "cons"): st[k] += NT - 16
    if dT: st["dd"] = [int(x, 36) for x in str(dT)]
    c("---- true max of this wave's 512 scores per head")
    e(f"v_max_f32_dpp v{vmx}, v{vmx}, v{vmx} quad_perm:[1,0,3,2]{DPP}")
    e(f"v_max_f32_dpp v{vmx}, v{vmx}, v{vmx} quad_perm:[2,3,0,1]{DPP}")
    gate()
    xrow(vmx, "v_max_f32")
    e(f"v_mul_f32 v{vnmc}, s{sNC}, v{vmx}"); e(f"v_min_u32 v{vML}, -2, v{vmx}")
    gate()
    def softp(g):
        for k in (g, g + 1): e(f"v_fma_f32 v{vP+k}, v{vP+k}, s{sC}, v{vnmc}")
        for k in (g, g + 1): e(f"v_exp_f32 v{vP+k}, v{vP+k}")
        if g == 0: e(f"v_mov_b64 v[{vLs}:{vLs+1}], v[{vP}:{vP+1}]")
        else: e(f"v_pk_add_f32 v[{vLs}:{vLs+1}], v[{vLs}:{vLs+1}], v[{vP+g}:{vP+g+1}]")
        for k in (g, g + 1): e(f"v_cvt_pk_bf16_f32 v{vP+k}, v{vP+k}, v{vP+k}")
    softp(0)
    gate()
    def mkx(t, pbase):
        if t < NT:
            X = vX + 2 * (t % 2); k = t % 4
            e(f"v_and_b32_dpp v{X}, v{vP + t//4 - pbase}, v{vM0} quad_perm:[{k},{k},{k},{k}]{DPP}")
            e(f"v_and_b32_dpp v{X+1}, v{vP + t//4 - pbase}, v{vM1} quad_perm:[{k},{k},{k},{k}]{DPP}")
    def vtile(t, pbase, extra=None):
        needdata(NT + t)
        if nofin and t >= nofin:
            st["cons"] = NT + t + 1; gate(); return
        src = slot(NT + t); X = vX + 2 * (t % 2)
        e(f"v_mfma_f32_16x16x16_bf16 v[{vA}:{vA+3}], v[{src}:{src+1}], v[{X}:{X+1}], v[{vA}:{vA+3}]")
        e(f"v_mfma_f32_16x16x16_bf16 v[{vA+4}:{vA+7}], v[{src+2}:{src+3}], v[{X}:{X+1}], v[{vA+4}:{vA+7}]")
        st["cons"] = NT + t + 1
        gate()
        if extra: extra()
        mkx(t + 2, pbase)
    mkx(0, 0); mkx(1, 0)
    c("---- V phase, first 16 tiles: the remaining exponentials ride along")
    def fin_l():
        e(f"v_add_f32 v{vML+1}, v{vLs}, v{vLs+1}")
        e(f"v_add_f32_dpp v{vML+1}, v{vML+1}, v{vML+1} quad_perm:[1,0,3,2]{DPP}")
        e(f"v_add_f32_dpp v{vML+1}, v{vML+1}, v{vML+1} quad_perm:[2,3,0,1]{DPP}")
        xrow(vML + 1, "v_add_f32")
        e(f"v_min_u32 v{vML+1}, -2, v{vML+1}")
        e(f"ds_write_b64 v{vt2}, v[{vML}:{vML+1}] offset:{MLX}")
        e(f"v_mov_b32 v{vnmc}, 0")
    for t in range(16): vtile(t, 0, (lambda t=t: softp(2 * t + 2)) if t < 15 else fin_l)
    rotP(0, NP - 4)
    e(f"s_mov_b32 s{sCnt}, {KV}")
    if dV:
        st["dd"] = [int(x, 36) for x in str(dV)]
    st["C"] = min(st["C"], st["I"] - max(st.get("dd", d1)) + 1)
    LV = st["I"] - st["cons"]; C0 = st["C"] - st["cons"]
    c("---- V phase, steady state")
    lab("L_vloop")
    for t in range(16, 32): vtile(t, 4)
    assert st["I"] - st["cons"] == LV and st["C"] - st["cons"] >= C0
    rotP(0, NP - 8)
    if stamps == 2:
        e(f"s_memrealtime s[{sSt}:{sSt+1}]"); e(f"s_sub_u32 s{sT}, {12+KV}, s{sCnt}"); e("s_waitcnt lgkmcnt(0)")
        e(f"s_mov_b32 m0, s{sT}"); e(f"v_writelane_b32 v{vSt}, s{sSt}, m0")
    e(f"s_sub_u32 s{sCnt}, s{sCnt}, 1"); e(f"s_cmp_lg_u32 s{sCnt}, 0"); e("s_cbranch_scc1 L_vloop")
    for k in ("I", "C", "cons"): st[k] += 16 * (KV - 1)
    c("---- V phase, end: the window opens up to the whole ring")
    st["deep"] = True
    KD = 6 - KV
    if dloop and KD >= 2:
        assert st["I"] - st["cons"] == NSLOT
        e(f"s_mov_b32 s{sCnt}, {KD}")
        st["C"] = st["cons"]
        t0 = 16 * (KV + 1)
        lab("L_dloop")
        for t in range(t0, t0 + 16): vtile(t, 4 * (KV + 1))
        rotP(0, 4 * KD)
        e(f"s_sub_u32 s{sCnt}, s{sCnt}, 1"); e(f"s_cmp_lg_u32 s{sCnt}, 0"); e("s_cbranch_scc1 L_dloop")
        for k in ("I", "C", "cons"): st[k] += 16 * (KD - 1)
        if xch:
            c("the helper published the two waves' merge factors and the hand-off mode long ago (poison until then)")
            lab("L_beta")
            e(f"ds_read_b64 v[{vAL}:{vAL+1}], v{vMW} offset:{BX}")
            e(f"ds_read_b32 v{vt}, v{vnmc} offset:{FLAG}")
            e("s_waitcnt lgkmcnt(0)")
            e(f"v_cmp_eq_u32 vcc, -1, v{vAL}"); e("s_cbranch_vccnz L_beta")
            e(f"v_readfirstlane_b32 s{sFast}, v{vt}")
        for t in range(NT - 16, NT - xch): vtile(t, NP - 4)
    else:
        for t in range(16 * (KV + 1), NT): vtile(t, 4 * (KV + 1))
    assert st["I"] == NTOT
    if xch:
        c("---- last tile; wave w keeps accumulator half w, hands the other half to its partner through LDS")
        src = slot(NTOT - 1); X = vX + 2
        e(f"s_cmp_eq_u32 s{sWave}, 0"); e("s_cbranch_scc1 L_x0")
        for w in (1, 0):
            if w == 0: lab("L_x0")
            keep = vA + 4 * w; send = vA + 4 * (1 - w)
            e(f"s_cmp_eq_u32 s{sFast}, 0")
            e("s_waitcnt vmcnt(0)")
            for a in (send, keep):
                o = src + (2 if a == vA + 4 else 0)
                e(f"v_mfma_f32_16x16x16_bf16 v[{a}:{a+3}], v[{o}:{o+1}], v[{X}:{X+1}], v[{a}:{a+3}]")
            stamp_async(1)
            e(f"ds_write_b128 v{vLW}, v[{send}:{send+3}] offset:{XCH}")
            own = "op_sel_hi:[1,0]" if w == 0 else "op_sel:[0,1] op_sel_hi:[1,1]"
            oth = "op_sel_hi:[1,0,1]" if w == 1 else "op_sel:[0,1,0] op_sel_hi:[1,1,1]"
            for r in (0, 2): e(f"v_pk_mul_f32 v[{keep+r}:{keep+r+1}], v[{keep+r}:{keep+r+1}], v[{vAL}:{vAL+1}] {own}")
            e("s_waitcnt lgkmcnt(0)"); e("s_barrier")
            e(f"ds_read_b128 v[{vD}:{vD+3}], v{vLR} offset:{XCH}")
            stamp_async(2)
            e("s_waitcnt lgkmcnt(0)")
            for r in (0, 2): e(f"v_pk_fma_f32 v[{vD+r}:{vD+r+1}], v[{vD+r}:{vD+r+1}], v[{vAL}:{vAL+1}], v[{keep+r}:{keep+r+1}] {oth}")
            if w == 1:
                e(f"v_cvt_pk_bf16_f32 v{vD}, v{vD}, v{vD+1}"); e(f"v_cvt_pk_bf16_f32 v{vD+1}, v{vD+2}, v{vD+3}")
                e(f"v_min_u32 v{vD}, -2, v{vD}"); e(f"v_min_u32 v{vD+1}, -2, v{vD+1}")
                e("s_cbranch_scc1 L_slowO")
                if nohelp < 2: e(f"global_store_dwordx2 v{vOut}, v[{vD}:{vD+1}], s[20:21]")
                e("s_branch L_sdone" if (stamps or ampx) else "s_endpgm")
    else:
        stamp_async(1)
        c("---- combine the two waves through LDS and publish this workgroup's partial (bf16)")
        e(f"ds_write2st64_b64 v{vLW}, v[{vA}:{vA+1}], v[{vA+2}:{vA+3}] offset0:0 offset1:1")
        e(f"ds_write2st64_b64 v{vLW}, v[{vA+4}:{vA+5}], v[{vA+6}:{vA+7}] offset0:2 offset1:3")
        e("s_waitcnt lgkmcnt(0)"); e("s_barrier")
        e(f"ds_read_b32 v{vt}, v{vnmc} offset:{FLAG}")
        e(f"ds_read_b64 v[{vX}:{vX+1}], v{vMW} offset:{BX}")
        e(f"ds_read2st64_b64 v[{vD}:{vD+3}], v{vLR} offset0:0 offset1:1")
        e(f"ds_read2st64_b64 v[{vD+4}:{vD+7}], v{vLR} offset0:4 offset1:5")
        stamp_async(2)
        e(f"s_waitcnt lgkmcnt({0 if stamps else 1})")
        e(f"v_readfirstlane_b32 s{sT}, v{vt}")
        e(f"v_pk_mul_f32 v[{vD}:{vD+1}], v[{vD}:{vD+1}], v[{vX}:{vX+1}] op_sel_hi:[1,0]")
        e(f"v_pk_mul_f32 v[{vD+2}:{vD+3}], v[{vD+2}:{vD+3}], v[{vX}:{vX+1}] op_sel_hi:[1,0]")
        e("s_waitcnt lgkmcnt(0)")
        e(f"v_pk_fma_f32 v[{vD}:{vD+1}], v[{vD+4}:{vD+5}], v[{vX}:{vX+1}], v[{vD}:{vD+1}] op_sel:[0,1,0] op_sel_hi:[1,1,1]")
        e(f"v_pk_fma_f32 v[{vD+2}:{vD+3}], v[{vD+6}:{vD+7}], v[{vX}:{vX+1}], v[{vD+2}:{vD+3}] op_sel:[0,1,0] op_sel_hi:[1,1,1]")
        e(f"s_cmp_eq_u32 s{sT}, 0")

    e(f"v_cvt_pk_bf16_f32 v{vD}, v{vD}, v{vD+1}"); e(f"v_cvt_pk_bf16_f32 v{vD+1}, v{vD+2}, v{vD+3}")
    e(f"v_min_u32 v{vD}, -2, v{vD}"); e(f"v_min_u32 v{vD+1}, -2, v{vD+1}")
    ost = f"global_store_dwordx2 v{vOut}, v[{vD}:{vD+1}], s[20:21]"
    e("s_cbranch_scc1 L_slowO")
    if nohelp < 2: e(ost)
    lab("L_sdone")
    if ampx:
        e("s_waitcnt lgkmcnt(0)"); e("s_sub_u32 s60, s58, s56"); e("s_mul_i32 s60, s60, 100"); e("s_add_u32 s60, s60, 6000")
        lab("L_ampx")
        e("s_memrealtime s[58:59]"); e("s_waitcnt lgkmcnt(0)"); e("s_sub_u32 s61, s58, s56"); e("s_cmp_lt_u32 s61, s60"); e("s_cbranch_scc1 L_ampx")
    if stamps:
        stamp(58)
        e(f"v_writelane_b32 v{vSt}, s{sSt+2}, 56"); e(f"v_writelane_b32 v{vSt}, s{sSt+4}, 57")
        e("s_branch L_fin")
    else: e("s_endpgm")
    lab("L_slowO")
    e(ost + " sc1")
    e("s_waitcnt vmcnt(0)"); e("s_barrier")
    e("s_branch L_sdone" if stamps else "s_endpgm")

    c("================ helper wave ================")
    lab("L_helper")
    if ic:
        if ic in (2, 3, 4):
            e(f"s_getpc_b64 s[{sT}:{sT+1}]"); lab("L_icb")
            e(f"s_add_u32 s{sT}, s{sT}, L_ic0-L_icb"); e(f"s_addc_u32 s{sT+1}, s{sT+1}, 0")
            e(f"v_and_b32 v{vLane}, 63, v0")
            e(f"v_mad_u64_u32 v[2:3], vcc, v{vLane}, 32, s[{sT}:{sT+1}]")
        e("s_memrealtime s[56:57]"); e("s_waitcnt lgkmcnt(0)")
        if ic in (2, 3, 4): e(f"global_load_dword v{vPF}, v[2:3], off")
        if ic in (3, 4): e("s_waitcnt vmcnt(0)")
        if ic == 3:
            e("s_memrealtime s[56:57]"); e("s_waitcnt lgkmcnt(0)")
        if ic != 4: e("s_branch L_ic0")
        lab("L_icret")
        e("s_memrealtime s[62:63]"); e("s_waitcnt lgkmcnt(0)")
    hP = vR; hKT = vR + 4; hVT = vR + 8; hMask = vR + 12; hTa = vR + 14; hO = vR + 22; hML = vR + 30; hG = vR + 32; hCnt = vR + 34
    vCO, vCM, vOA = vK, vV, vM0
    if hprio: e(f"s_setprio {hprio}")
    e("s_load_dwordx2 s[20:21], s[0:1], 64")
    e(f"v_and_b32 v{vLane}, 63, v0")
    if stamps: e(f"v_mov_b32 v{vSt}, 0")
    e(f"s_mov_b32 s{sC}, {f32(CC)}"); e(f"s_mov_b32 s{sNC}, {f32(-CC)}")
    e(f"s_lshl_b32 s{sT}, s{sRec}, 10"); e(f"v_lshl_add_u32 v{vLW}, v{vLane}, 4, s{sT}")
    e(f"s_lshl_b32 s{sT}, s{sRec}, 5"); e(f"s_add_u32 s{sT}, s{sT}, {MLB}")
    e(f"v_lshl_add_u32 v{vOut}, v{vLane}, 1, s{sT}")
    for r in range(0, 4, 2): e(f"v_mov_b64 v[{hP+r}:{hP+r+1}], -1")
    c("this workgroup reduces output slice c = split: h = c&3, g = (c>>2)&3, w = c>>4; lane = (producer l>>1, which l&1)")
    e(f"s_lshl_b32 s{sT}, s{sKV}, 8")
    e(f"v_and_b32 v{vt2}, 63, v{vC}"); e(f"v_lshl_add_u32 v{vt2}, v{vt2}, 2, s{sT}")
    e(f"v_and_b32 v{vt}, 1, v{vLane}")
    e(f"s_bfe_u32 s{sT2}, s{sSplit}, 0x20002"); e(f"s_lshl_b32 s{sT2}, s{sT2}, 6"); e(f"s_add_u32 s{sT}, s{sT}, s{sT2}")
    e(f"s_lshr_b32 s{sT2}, s{sSplit}, 4"); e(f"s_lshl_b32 s{sT2}, s{sT2}, 3"); e(f"s_add_u32 s{sT}, s{sT}, s{sT2}")
    e(f"v_lshl_add_u32 v{vLR}, v{vt}, 2, s{sT}")
    e(f"v_mov_b32 v{vnmc}, 0")
    e("s_waitcnt lgkmcnt(0)")
    if nohelp:
        e(f"v_mov_b32 v{vX}, 1.0"); e(f"v_mov_b32 v{vX+1}, 1.0"); e(f"v_lshlrev_b32 v{vt2}, 3, v{vLane}")
        e(f"ds_write_b32 v{vnmc}, v{vX} offset:{FLAG}"); e(f"ds_write_b64 v{vt2}, v[{vX}:{vX+1}] offset:{BX}")
        e("s_waitcnt lgkmcnt(0)"); e("s_barrier"); e("s_branch L_fin")
    if late:
        e(f"s_cmp_lg_u32 s{sSplit}, 5"); e("s_cbranch_scc1 L_notlate")
        for _ in range(late): e("s_sleep 127")
        lab("L_notlate")
    c("poison this workgroup's hand-off slots (plain stores: they stay in this XCD's L2)")
    e(f"global_store_dwordx4 v{vLW}, v[{hP}:{hP+3}], s[20:21]")
    e("s_mov_b64 exec, 0x1111")
    e(f"global_store_dwordx2 v{vOut}, v[{hP}:{hP+1}], s[20:21]")
    e("s_mov_b64 exec, -1")
    if amp2:
        e(f"s_cmp_lg_u32 s{sSplit}, 0"); e("s_cbranch_scc1 L_nopub")
        e(f"s_lshl_b32 s{sT}, s{sKV}, 2"); e(f"s_add_u32 s{sT}, s{sT}, 0x2000000"); e(f"v_mov_b32 v{hO}, s{sT}"); e(f"v_mov_b32 v{hO+1}, s56")
        e("s_mov_b64 exec, 1"); e(f"global_store_dword v{hO}, v{hO+1}, s[20:21] sc1"); e("s_mov_b64 exec, -1")
        lab("L_nopub")
    e(f"global_load_dwordx4 v[{vQ}:{vQ+3}], v{vmx}, s[4:5]")
    e(f"global_load_dwordx4 v[{hKT}:{hKT+3}], v{vt2}, s[10:11]")
    for k in range(4): e(f"global_load_dword v{hVT+k}, v{vLR}, s[12:13] offset:{32*(k>>1) + 16*(k&1)}")
    e(f"global_load_ushort v{hMask}, v{vnmc}, s[14:15]")
    e(f"s_and_b32 s{sMT}, s{sSplit}, 3")
    e(f"s_mul_i32 s{sT}, s{sKV}, 768"); e(f"s_lshl_b32 s{sT2}, s{sMT}, 8"); e(f"s_add_u32 s{sT}, s{sT}, s{sT2}"); e(f"v_add_u32 v{vOA}, s{sT}, v{vLR}")
    e(f"v_and_b32 v{vmx}, 48, v{vLane}"); e(f"v_add_u32 v{vOA}, v{vmx}, v{vOA}")
    if 'o' in touch:
        c("translation warm-up for the final store (value unused)")
        e(f"global_load_dword v{vPF}, v{vOA}, s[16:17]")
    if 'v' in touch:
        c("translation warm-up for this workgroup's V region (value unused)")
        e(f"s_lshl_b32 s{sT}, s{sRec}, 18"); e(f"v_mov_b32 v{vmx}, s{sT}"); e(f"global_load_dword v{vSt}, v{vmx}, s[8:9] nt")
    e(f"v_lshrrev_b32 v{vmx}, 1, v{vLane}")
    e(f"s_lshl_b32 s{sT}, s{sKV}, 10"); e(f"s_lshl_b32 s{sT2}, s{sMT}, 3"); e(f"s_add_u32 s{sT}, s{sT}, s{sT2}"); e(f"s_add_u32 s{sT}, s{sT}, {MLB}")
    e(f"v_lshl_add_u32 v{vCM}, v{vmx}, 5, s{sT}")
    e(f"s_lshl_b32 s{sT}, s{sKV}, 15"); e(f"s_lshl_b32 s{sT2}, s{sMT}, 5"); e(f"s_add_u32 s{sT}, s{sT}, s{sT2}")
    e(f"s_bfe_u32 s{sT2}, s{sSplit}, 0x20002"); e(f"s_lshl_b32 s{sT2}, s{sT2}, 7"); e(f"s_add_u32 s{sT}, s{sT}, s{sT2}")
    e(f"s_lshr_b32 s{sT2}, s{sSplit}, 4"); e(f"s_lshl_b32 s{sT2}, s{sT2}, 9"); e(f"s_add_u32 s{sT}, s{sT}, s{sT2}")
    e(f"v_lshl_add_u32 v{vCO}, v{vmx}, 10, s{sT}"); e(f"v_lshl_add_u32 v{vCO}, v{vt}, 4, v{vCO}")
    c("arm: once the poison is in L2, d_debug byte [kv*32+split] = 0x80 | XCC id (plain store)")
    e(f"s_getreg_b32 s{sInc}, hwreg(HW_REG_XCC_ID, 0, 4)")
    e(f"s_or_b32 s{sInc}, s{sInc}, 0x80")
    e(f"s_lshl_b32 s{sT}, s{sKV}, 5")
    e(f"v_mov_b32 v{vt}, s{sRec}"); e(f"v_mov_b32 v{vt2}, s{sInc}")
    e(f"v_and_b32 v{vMW}, 7, v{vLane}"); e(f"v_lshl_add_u32 v{vMW}, v{vMW}, 2, s{sT}")
    e(f"s_mul_i32 s{sInc}, s{sInc}, 0x01010101"); e(f"s_lshl_b32 s{sMT}, s{sMT}, 2")
    e("s_waitcnt vmcnt(0)")
    e("s_mov_b64 exec, 1")
    e(f"global_store_byte v{vt}, v{vt2}, s[18:19]")
    e("s_mov_b64 exec, -1")
    c("tree token: raw score q.k_tree + (1-mask)*(-1e9/scale) and its v_tree slice (lanes 0,1 only)")
    qk(vD, hKT)
    e(f"v_lshlrev_b32 v{hMask}, 16, v{hMask}"); e(f"v_sub_f32 v{hMask}, 1.0, v{hMask}"); e(f"s_mov_b32 s{sT}, {f32(BIG)}")
    e(f"v_cmp_gt_u32 vcc, 2, v{vLane}")
    for k in range(8):
        if k & 4: e(f"v_and_b32 v{hTa+k}, 0xffff0000, v{hVT + (k & 3)}")
        else: e(f"v_lshlrev_b32 v{hTa+k}, 16, v{hVT + (k & 3)}")
    for k in range(8): e(f"v_cndmask_b32 v{hTa+k}, 0, v{hTa+k}, vcc")
    e(f"v_mov_b32_dpp v{vT}, v{vD} quad_perm:[0,0,0,0]{DPP}")
    for u in range(1, 4): e(f"v_add_f32_dpp v{vT}, v{vD+u}, v{vT} quad_perm:[{u},{u},{u},{u}]{DPP}")
    e(f"v_fma_f32 v{vT}, v{hMask}, s{sT}, v{vT}")
    e(f"v_readlane_b32 s{sMT}, v{vT}, s{sMT}")
    e(f"v_lshlrev_b32 v{vt2}, 3, v{vLane}")
    e(f"s_mov_b32 s{sCnt}, {spin}")
    def mlread(): e(f"ds_read2st64_b64 v[{vD}:{vD+3}], v{vt2} offset0:{MLX//512} offset1:{MLX//512+1}")
    def mlcheck():
        e(f"v_max3_u32 v{vt}, v{vD}, v{vD+1}, v{vD+2}"); e(f"v_max_u32 v{vt}, v{vt}, v{vD+3}")
        e(f"v_cmp_eq_u32 vcc, -1, v{vt}")
    c("FAST iff all 32 workgroups of this head have armed on this XCD; still open when our (m,l) are ready -> SLOW")
    lab("L_armchk")
    e(f"s_sleep {asleep}")
    e(f"global_load_dword v{hCnt}, v{vMW}, s[18:19] sc1")
    mlread()
    e(f"s_mov_b32 s{sFast}, {0 if force == 'slow' else 1}")
    e("s_waitcnt vmcnt(0) lgkmcnt(0)")
    e(f"v_and_b32 v{hCnt}, 0xbfbfbfbf, v{hCnt}"); e(f"v_cmp_ne_u32 vcc, s{sInc}, v{hCnt}")
    e("s_cbranch_vccz L_armed")
    mlcheck()
    e("s_cbranch_vccnz L_armchk")
    e(f"s_mov_b32 s{sFast}, 0")
    lab("L_armed")
    e(f"v_mov_b32 v{vt}, s{sFast}"); e(f"ds_write_b32 v{vnmc}, v{vt} offset:{FLAG}")
    c("wait for the streaming waves' (m,l), merge them, publish (M,L)")
    lab("L_ldspoll")
    e(f"s_sleep {lsleep}")
    mlread()
    e("s_waitcnt lgkmcnt(0)")
    mlcheck()
    e("s_cbranch_vccnz L_ldspoll")
    e(f"v_max_f32 v{vML}, v{vD}, v{vD+2}")
    e(f"v_mul_f32 v{vnmc}, s{sNC}, v{vML}")
    for j in range(2): e(f"v_fma_f32 v{vX+j}, v{vD+2*j}, s{sC}, v{vnmc}")
    for j in range(2): e(f"v_exp_f32 v{vX+j}, v{vX+j}")
    e(f"s_cmp_eq_u32 s{sFast}, 0")
    e(f"v_mul_f32 v{vML+1}, v{vX}, v{vD+1}")
    e(f"v_fma_f32 v{vML+1}, v{vX+1}, v{vD+3}, v{vML+1}")
    if xch: e(f"v_min_u32 v{vX}, -2, v{vX}")
    e(f"ds_write_b64 v{vt2}, v[{vX}:{vX+1}] offset:{BX}")
    e(f"v_min_u32 v{vML+1}, -2, v{vML+1}")
    e("s_mov_b64 exec, 0x1111")
    e("s_cbranch_scc1 L_slowM")
    e(f"global_store_dwordx2 v{vOut}, v[{vML}:{vML+1}], s[20:21]")
    lab("L_mgo")
    e("s_mov_b64 exec, -1")
    c("gather the 32 (M,L) of this head and turn them into final weights")
    lab("L_pollM")
    e(f"s_sleep {msleep}")
    e(f"global_load_dwordx2 v[{hML}:{hML+1}], v{vCM}, s[20:21] sc1")
    e(f"s_sub_u32 s{sCnt}, s{sCnt}, 1"); e("s_cbranch_scc1 L_mto")
    e("s_waitcnt vmcnt(0)")
    e(f"v_max_u32 v{vmx}, v{hML}, v{hML+1}"); e(f"v_cmp_eq_u32 vcc, -1, v{vmx}")
    e("s_cbranch_vccnz L_pollM")
    lab("L_mto")
    stamp_async(1)
    e(f"v_max_f32 v{vmx}, s{sMT}, v{hML}")
    xrow(vmx, "v_max_f32")
    for ctl in ("row_ror:8", "row_ror:4", "quad_perm:[2,3,0,1]"): e(f"v_max_f32_dpp v{vmx}, v{vmx}, v{vmx} {ctl}{DPP}")
    e(f"v_sub_f32 v{hG}, v{hML}, v{vmx}"); e(f"v_sub_f32 v{vAL}, s{sMT}, v{vmx}")
    e(f"v_mul_f32 v{hG}, s{sC}, v{hG}"); e(f"v_mul_f32 v{vAL}, s{sC}, v{vAL}")
    e(f"v_exp_f32 v{hG}, v{hG}"); e(f"v_exp_f32 v{vAL}, v{vAL}")
    e(f"v_mul_f32 v{vmx}, v{hG}, v{hML+1}")
    xrow(vmx, "v_add_f32")
    for ctl in ("row_ror:8", "row_ror:4", "quad_perm:[2,3,0,1]"): e(f"v_add_f32_dpp v{vmx}, v{vmx}, v{vmx} {ctl}{DPP}")
    e(f"v_add_f32 v{vmx}, v{vmx}, v{vAL}"); e(f"v_rcp_f32 v{vmx}, v{vmx}")
    e(f"v_mul_f32 v{hG}, v{hG}, v{vmx}"); e(f"v_mul_f32 v{vAL}, v{vAL}, v{vmx}")
    for r in range(0, 8, 2): e(f"v_pk_mul_f32 v[{hTa+r}:{hTa+r+1}], v[{hTa+r}:{hTa+r+1}], v[{vAL}:{vAL+1}] op_sel_hi:[1,0]")
    e(f"s_mov_b32 s{sCnt}, {spin}")
    e(f"s_mov_b32 s{sOdd}, 0x00030003"); e(f"s_mov_b32 s{sOdd+1}, 0x00030003")
    e(f"s_cmp_eq_u32 s{sFast}, 0"); e("s_cbranch_scc1 L_pollO")
    e("s_waitcnt lgkmcnt(0)"); e("s_barrier")
    if nopoll: e("s_branch L_fin")
    def oload(): e(f"global_load_dwordx4 v[{hO}:{hO+3}], v{vCO}, s[20:21] sc1")
    def ocheck():
        e(f"v_max3_u32 v{vt}, v{hO}, v{hO+1}, v{hO+2}"); e(f"v_max_u32 v{vt}, v{vt}, v{hO+3}")
        e(f"v_cmp_eq_u32 vcc, -1, v{vt}")
    c("gather the partials: only lanes still holding poison keep loading; the last few are polled back to back")
    lab("L_pollO")
    oload()
    if osleep: e(f"s_sleep {osleep}")
    e(f"s_sub_u32 s{sCnt}, s{sCnt}, 1"); e("s_cbranch_scc1 L_fin")
    e("s_waitcnt vmcnt(0)")
    ocheck()
    e(f"s_bcnt1_i32_b64 s{sT2}, vcc"); e("s_cbranch_scc0 L_done")
    e("s_mov_b64 exec, vcc")
    e(f"s_cmp_gt_u32 s{sT2}, {thr}"); e("s_cbranch_scc1 L_pollO")
    lab("L_pollO2")
    oload()
    e(f"s_sub_u32 s{sCnt}, s{sCnt}, 1"); e("s_cbranch_scc1 L_fin")
    e(f"s_waitcnt vmcnt({pdepth-1})")
    ocheck()
    e("s_and_b64 exec, exec, vcc"); e("s_cbranch_scc1 L_pollO2")
    lab("L_done")
    if amph == 2: e("s_memrealtime s[56:57]")
    e("s_mov_b64 exec, -1")
    stamp_async(2)
    R_ = hTa; U_ = vD
    for k in range(4):
        e(f"v_lshlrev_b32 v{U_+2*k}, 16, v{hO+k}"); e(f"v_and_b32 v{U_+2*k+1}, 0xffff0000, v{hO+k}")
    for r in range(0, 8, 2): e(f"v_pk_fma_f32 v[{R_+r}:{R_+r+1}], v[{U_+r}:{U_+r+1}], v[{hG}:{hG+1}], v[{hTa+r}:{hTa+r+1}] op_sel_hi:[1,0,1]")
    for r in (0, 1, 4, 5): e(f"v_permlane32_swap_b32 v{R_+r}, v{R_+r+2}")
    for r in (0, 4): e(f"v_pk_add_f32 v[{R_+r}:{R_+r+1}], v[{R_+r}:{R_+r+1}], v[{R_+r+2}:{R_+r+3}]")
    e(f"v_permlane16_swap_b32 v{R_}, v{R_+1}"); e(f"v_permlane16_swap_b32 v{R_+4}, v{R_+5}")
    e(f"v_add_f32 v{R_}, v{R_}, v{R_+1}"); e(f"v_add_f32 v{R_+4}, v{R_+4}, v{R_+5}")
    for ctl in ("row_ror:8", "row_ror:4", "quad_perm:[2,3,0,1]"):
        for x in (R_, R_ + 4): e(f"v_add_f32_dpp v{x}, v{x}, v{x} {ctl}{DPP}")
    e(f"s_mov_b64 exec, s[{sOdd}:{sOdd+1}]")
    e(f"v_cvt_pk_bf16_f32 v{R_}, v{R_}, v{R_+4}")
    if amph == 1: e("s_memrealtime s[56:57]")
    e(f"global_store_dword v{vOA}, v{R_}, s[16:17]")
    if amph:
        e("s_waitcnt vmcnt(0)"); e("s_memrealtime s[62:63]"); e("s_waitcnt lgkmcnt(0)")
        e("s_sub_u32 s60, s62, s56"); e("s_mul_i32 s60, s60, 100"); e("s_add_u32 s60, s60, 4000")
        lab("L_amph")
        e("s_memrealtime s[58:59]"); e("s_waitcnt lgkmcnt(0)"); e("s_sub_u32 s61, s58, s56"); e("s_cmp_lt_u32 s61, s60"); e("s_cbranch_scc1 L_amph")
    if stamps:
        e("s_mov_b64 exec, -1")
        stamp(61); e("s_waitcnt vmcnt(0)"); stamp(62)
        e(f"v_writelane_b32 v{vSt}, s{sSt+2}, 59"); e(f"v_writelane_b32 v{vSt}, s{sSt+4}, 60")
    lab("L_fin")
    if ic:
        e("s_sub_u32 s60, s62, s56"); e("s_mul_i32 s60, s60, 100"); e("s_add_u32 s60, s60, 6000")
        lab("L_icamp")
        e("s_memrealtime s[58:59]"); e("s_waitcnt lgkmcnt(0)"); e("s_sub_u32 s61, s58, s56"); e("s_cmp_lt_u32 s61, s60"); e("s_cbranch_scc1 L_icamp")
    if amp:
        e("s_waitcnt vmcnt(0)"); e("s_memrealtime s[58:59]"); e("s_waitcnt lgkmcnt(0)")
        if amp2:
            e("s_mov_b64 exec, -1")
            e(f"v_and_b32 v{vt}, 7, v{vLane}"); e(f"v_lshlrev_b32 v{vt}, 2, v{vt}"); e(f"v_add_u32 v{vt}, 0x2000000, v{vt}")
            e(f"global_load_dword v{vt}, v{vt}, s[20:21] sc1"); e("s_waitcnt vmcnt(0)")
            e(f"v_sub_u32 v{vt}, s58, v{vt}")
            for k in range(8):
                e(f"v_readlane_b32 s61, v{vt}, {k}"); e("s_nop 1")
                e("s_mov_b32 s60, s61" if k == 0 else "s_max_u32 s60, s60, s61")
            e("s_min_u32 s60, s60, 4000"); e("s_sub_u32 s56, s58, s60")
        e("s_sub_u32 s60, s58, s56"); e(f"s_mul_i32 s60, s60, {amp}"); e("s_add_u32 s60, s60, 6000")
        lab("L_amp")
        e("s_memrealtime s[58:59]"); e("s_waitcnt lgkmcnt(0)"); e("s_sub_u32 s61, s58, s56"); e("s_cmp_lt_u32 s61, s60"); e("s_cbranch_scc1 L_amp")
    if stamps:
        e("s_mov_b64 exec, -1")
        e(f"s_mul_i32 s{sT}, s2, {(W+1)*64}"); e(f"s_add_u32 s{sT}, s{sT}, s{sWave}"); e(f"s_lshl_b32 s{sT}, s{sT}, 2")
        e("s_add_u32 s20, s20, 0x8000000"); e("s_addc_u32 s21, s21, 0")
        e(f"v_lshl_add_u32 v{vt}, v{vLane}, 2, s{sT}")
        e(f"global_store_dword v{vt}, v{vSt}, s[20:21]")
    lab("L_end")
    e("s_endpgm")
    c("SLOW: everything is written through; bit 6 of our d_debug byte (memory-side atomic) says so; wait for all 32")
    lab("L_slowM")
    e(f"global_store_dwordx2 v{vOut}, v[{vML}:{vML+1}], s[20:21] sc1")
    e("s_mov_b64 exec, -1")
    e("s_waitcnt lgkmcnt(0)"); e("s_barrier")
    e(f"s_and_b32 s{sT}, s{sRec}, 0xfc")
    e(f"s_and_b32 s{sT2}, s{sSplit}, 3"); e(f"s_lshl_b32 s{sT2}, s{sT2}, 3"); e(f"s_lshl_b32 s{sT2}, 0x40, s{sT2}")
    e(f"v_mov_b32 v{vt}, s{sT}"); e(f"v_mov_b32 v{vt2}, s{sT2}"); e(f"v_mov_b32 v{vnmc}, 0")
    e("s_waitcnt vmcnt(0)"); e("s_barrier")
    e("s_mov_b64 exec, 1")
    e(f"global_atomic_or v{vt}, v{vt2}, s[18:19]")
    lab("L_slowwait")
    e("s_mov_b64 exec, 0xff")
    e(f"global_atomic_or v{vmx}, v{vMW}, v{vnmc}, s[18:19] sc0")
    e(f"global_load_dword v{hCnt}, v{vMW}, s[18:19] sc1")
    e("s_waitcnt vmcnt(0)")
    e(f"v_and_b32 v{vmx}, 0x40404040, v{vmx}"); e(f"v_cmp_ne_u32 vcc, 0x40404040, v{vmx}")
    e("s_cbranch_vccz L_mgo")
    if force != 'slow':
        e(f"v_and_b32 v{hCnt}, 0xbfbfbfbf, v{hCnt}"); e(f"v_cmp_ne_u32 vcc, s{sInc}, v{hCnt}")
        e("s_cbranch_vccz L_mgo")
    e("s_sleep 32")
    e(f"s_sub_u32 s{sCnt}, s{sCnt}, 1"); e("s_cbranch_scc0 L_slowwait")
    e("s_branch L_fin")
    if ic:
        L.append(".p2align 8")
        for k in range(icn):
            lab(f"L_ic{k}")
            e(f"s_branch L_ic{k+1}" if k + 1 < icn else "s_branch L_icret")
            L.append(f".fill {icgap//4 - 1}, 4, 0xbf800000")
        L.append(f".fill {(2048 - icn*icgap)//4 if icn*icgap < 2048 else 0}, 4, 0xbf800000")
        e("s_endpgm")
    lab("L_codeend")
    L.append('.section .rodata,"a"'); L.append(".p2align 6"); L.append(f".amdhsa_kernel {KN}_kernel")
    L.append(f"  .amdhsa_next_free_vgpr {nv}"); L.append("  .amdhsa_next_free_sgpr 64"); L.append(f"  .amdhsa_accum_offset {(nv+3)//4*4}")
    L.append("  .amdhsa_group_segment_fixed_size 0"); L.append("  .amdhsa_kernarg_size 72"); L.append("  .amdhsa_user_sgpr_count 2")
    L.append("  .amdhsa_user_sgpr_kernarg_segment_ptr 1"); L.append("  .amdhsa_system_sgpr_workgroup_id_x 1"); L.append(".end_amdhsa_kernel")
    s = "\n".join(L) + "\n"
    s, n = hazard.fix(s)
    pr = hazard.check_branches(s)
    assert not pr, pr
    if pf:
        import subprocess, re
        open("_sz.s", "w").write(s)
        subprocess.run(["clang", "-x", "assembler", "-target", "amdgcn-amd-amdhsa", "-mcpu=gfx950", "-c", "_sz.s", "-o", "_sz.o"], check=True)
        out = subprocess.run(["llvm-readelf", "-S", "_sz.o"], capture_output=True, text=True).stdout
        size = int(re.search(r"\.text\s+PROGBITS\s+\S+\s+\S+\s+(\S+)", out).group(1), 16)
        assert 32 + 191 * pf + 4 <= size, (size, pf)
    return s
DOC = """;
;
;       O[h][32g + 8r + e (+4)].
;
;"""
if __name__ == "__main__":
    name = sys.argv[1]; kw = {}
    for a in sys.argv[2:]:
        k, v = a.split("=", 1)
        if k not in ("d1", "dT", "dV"):
            try: v = int(v)
            except ValueError: pass
        if k == "ldflags": v = v.replace("+", " ").replace("none", "")
        kw[k] = v
    open(name if "/" in name else f"build/{name}.s", "w").write(gen(**kw))
```

```python
import sys, struct, math
sys.path.insert(0, "tools")
import hazard
KN = "standalone__tree_speculative_verify_tree_attention_over_candidate_token_tree__decode"
def f32(x): return "0x%08x" % struct.unpack("<I", struct.pack("<f", x))[0]
SCALE = 128 ** -0.5
CC = SCALE * math.log2(math.e)
BIG = -1e9 / SCALE
HDR = open("cdna_kernels/" + KN + ".s.ref").read().split("; Override launch")[0]

def gen(LA=13, d1="a", KV=4, dloop=1, LP=10, stamps=0, ldflags="nt", spin=1 << 20, force="", hprio=0, pdepth=5,
        msleep=4, lsleep=4, asleep=8, osleep=1, pf=36, thr=8, amp=0, amp2=0, doc=0, late=0, lateall=0, xch=1, nofin=0, nopoll=0, nohelp=0, dT='', dV='', qf='', qpos=0, ampx=0, ic=0, icn=4, icgap=256, amph=0, touch='', hdelay=0, qs=0):
    W = 2; NWG = 256; NT = 128; NTOT = 256; NSLOT = 16; IG = 8; NP = 32
    d1 = [int(x, 36) for x in str(d1)]
    GSTEP = IG * W * 1024; REG = NT * W * 1024
    REC = 1024; MLB = 256 * REC
    MLX, BX, XCH, FLAG = 0, 1024, 2048, 4096
    assert xch
    lds = FLAG + 16
    L = []
    def e(s): L.append("    " + s)
    def c(s):
        if doc: L.append("    ; " + s)
    def lab(s): L.append(s + ":")
    DPP = " row_mask:0xf bank_mask:0xf"
    vK, vV, vM0, vM1 = 1, 2, 3, 4
    vt = 5; vmx = 6; vnmc = 7; vML = 8; vQ = 10; vA = 14; vD = 22; vT = 38; vX = 42; vLs = 46
    vLW = 48; vLR = 49; vMW = 50; vLane = 51; vt2 = 52; vOut = 53; vSt = 54; vAL = 56
    vPF = 55; vC = 57; vP = 58; vR = vP + NP
    nv = vR + 4 * NSLOT
    sWave = 3; sKV = 22; sSplit = 23; sInc = 24; sC = 25; sNC = 26; sCnt = 27; sT = 28; sT2 = 29; sRec = 30; sMT = 31
    sK = 32; sVb = 34; sSt = 40; sOdd = 48; sHi = 50; sFast = 52; sSw = 54
    def stamp(slot):
        if stamps:
            e(f"s_memrealtime s[{sSt}:{sSt+1}]"); e("s_waitcnt lgkmcnt(0)"); e(f"v_writelane_b32 v{vSt}, s{sSt}, {slot}")
    def stamp_async(k):
        if stamps: e(f"s_memrealtime s[{sSt + 2*k}:{sSt + 2*k + 1}]")
    L.append(HDR.rstrip())
    L.append(f"; @launch grid=({NWG},1,1) block=({(W+1)*64},1,1) lds={lds}")
    if doc: L.append(DOC.rstrip())
    L.append('.amdgcn_target "amdgcn-amd-amdhsa--gfx950"')
    L.append(".text"); L.append(f".globl {KN}_kernel"); L.append(".p2align 8"); L.append(f".type {KN}_kernel,@function"); L.append(f"{KN}_kernel:")
    stamp_async(1)
    if amp or ampx: e("s_memrealtime s[56:57]")
    c("The first 256 bytes hold everything up to the first loads: code past them is a cold instruction fetch.")
    c("s[4:5] q  s[6:7] k  s[8:9] v  s[10:11] k_tree  s[12:13] v_tree  s[14:15] mask  s[16:17] out  s[18:19] debug")
    e("s_load_dwordx16 s[4:19], s[0:1], 0")
    if pf:
        c("touch the rest of this kernel's code (loads only) so that instruction fetch finds it in L2")
        e(f"s_getpc_b64 s[{sT}:{sT+1}]")
        e(f"v_mad_u64_u32 v[2:3], vcc, v0, {pf}, s[{sT}:{sT+1}]")
        e(f"global_load_dword v{vPF}, v[2:3], off")
    e(f"s_lshr_b32 s{sSplit}, s2, 3"); e(f"s_cmp_gt_u32 s{sSplit}, 31"); e("s_cbranch_scc1 L_end")
    c("LDS hand-off slots (m,l) and merge factors start out as poison")
    e(f"v_lshlrev_b32 v{vt2}, 3, v0"); e(f"v_mov_b64 v[{vML}:{vML+1}], -1"); e(f"ds_write_b64 v{vt2}, v[{vML}:{vML+1}]")
    e(f"v_readfirstlane_b32 s{sWave}, v0")
    e(f"s_and_b32 s{sKV}, s2, 7")
    c("K/Q tile lane offset / 4: row ((l>>2)&3)*256 + 16-byte chunk (4*(l>>4) + (l&3))")
    e(f"v_and_b32 v{vt}, 3, v0"); e(f"v_and_b32 v{vC}, 48, v0"); e(f"v_lshl_or_b32 v{vC}, v{vt}, 2, v{vC}")
    e(f"v_and_b32 v{vt}, 12, v0"); e(f"v_lshl_or_b32 v{vC}, v{vt}, 4, v{vC}")
    e(f"s_lshl_b32 s{sRec}, s{sKV}, 5"); e(f"s_add_u32 s{sRec}, s{sRec}, s{sSplit}")
    e(f"s_lshl_b32 s{sT}, s{sRec}, 18")
    e(f"s_lshl_b32 s{sT2}, s{sKV}, 10"); e(f"v_lshl_add_u32 v{vmx}, v{vC}, 2, s{sT2}")
    e(f"s_add_u32 s{sT2}, s{sWave}, 32"); e(f"s_lshl_b32 s{sT2}, s{sT2}, 7"); e(f"v_lshl_add_u32 v{vK}, v{vC}, 2, s{sT2}")
    if lateall:
        e(f"s_and_b32 s{sCnt}, s{sSplit}, 7"); e(f"s_cmp_lg_u32 s{sCnt}, 3"); e("s_cbranch_scc1 L_notlate2")
        for _ in range(lateall): e("s_sleep 127")
        lab("L_notlate2")
    e("s_waitcnt lgkmcnt(0)")
    stamp_async(2)
    if ampx == 1: e("s_memrealtime s[58:59]")
    if qs:
        c("scalar touch of q: its address translation proceeds beside k's (value unused)")
        e(f"s_load_dword s{sSw}, s[4:5], 0")
    e(f"s_add_u32 s{sK}, s6, s{sT}"); e(f"s_addc_u32 s{sK+1}, s7, 0")
    e(f"s_bitcmp1_b32 s{sWave}, 7"); e("s_cbranch_scc1 L_bar")
    st = dict(I=0, C=0, cons=0, kloop=False, deep=False)
    def slot(n): return vR + 4 * (n % NSLOT)
    def issue():
        n = st["I"]; reg = slot(n)
        if n % 16 == 0 and st["kloop"]:
            c("last K iteration (SCC=1): the load stream moves on from K to V")
            e(f"s_cselect_b64 s[{sK}:{sK+1}], s[{sVb}:{sVb+1}], s[{sK}:{sK+1}]"); e(f"s_cselect_b64 s[{sSw}:{sSw+1}], -1, 0")
            e(f"v_cndmask_b32 v{vK}, v{vK}, v{vV}, s[{sSw}:{sSw+1}]")
        e(f"global_load_dwordx4 v[{reg}:{reg+3}], v{vK}, s[{sK}:{sK+1}] offset:{(n % 8)*1024 - 4096} {ldflags}")
        if n % IG == IG - 1 and n != NTOT - 1: e(f"v_add_u32 v{vK}, {GSTEP}, v{vK}")
        st["I"] += 1
    def needdata(n):
        if st["C"] < n + 1:
            e(f"s_waitcnt vmcnt({st['I'] - n - 1})"); st["C"] = n + 1
    def gate():
        if st["I"] >= min(NTOT, st["cons"] + NSLOT): return
        if not st["deep"]:
            dd = st.get("dd", d1)
            w = dd[st["I"] % len(dd)]
            if st["C"] < st["I"] - w + 1:
                e(f"s_waitcnt vmcnt({w-1})"); st["C"] = st["I"] - w + 1
            issue()
        else:
            while st["I"] < min(NTOT, st["cons"] + NSLOT): issue()
    for n in range(LP):
        if n == qpos and qf != "none": e(f"global_load_dwordx4 v[{vQ}:{vQ+3}], v{vmx}, s[4:5] {qf}")
        issue()
        if ampx == 10 + n + 1: e("s_memrealtime s[58:59]")
    lab("L_bar")
    e("s_barrier")
    e("s_cbranch_scc1 L_helper")
    c("================ streaming waves ================")
    while st["I"] < LA: issue()
    if ampx == 2: e("s_memrealtime s[58:59]")
    e("s_load_dwordx2 s[20:21], s[0:1], 64")
    e(f"v_and_b32 v{vLane}, 63, v0")
    e(f"s_add_u32 s{sVb}, s8, s{sT}"); e(f"s_addc_u32 s{sVb+1}, s9, 0")
    e(f"v_lshl_add_u32 v{vV}, v{vLane}, 4, s{sT2}")
    e(f"s_mov_b32 s{sC}, {f32(CC)}"); e(f"s_mov_b32 s{sNC}, {f32(-CC)}")
    e(f"s_mov_b32 s{sOdd}, 0xaaaaaaaa"); e(f"s_mov_b32 s{sOdd+1}, 0xaaaaaaaa"); e(f"s_mov_b32 s{sHi}, 0xcccccccc"); e(f"s_mov_b32 s{sHi+1}, 0xcccccccc")
    c("per-lane masks that drop a bf16 weight into k-slot (l&3) of the P operand")
    e(f"v_and_b32 v{vt}, 1, v{vLane}"); e(f"v_lshlrev_b32 v{vt}, 4, v{vt}"); e(f"v_mov_b32 v{vmx}, 0xffff"); e(f"v_lshlrev_b32 v{vt}, v{vt}, v{vmx}")
    e(f"v_bfe_i32 v{vmx}, v{vLane}, 1, 1")
    e(f"v_and_b32 v{vM1}, v{vmx}, v{vt}"); e(f"v_xor_b32 v{vM0}, v{vM1}, v{vt}")
    e(f"v_lshlrev_b32 v{vMW}, 3, v{vLane}")
    e(f"v_lshlrev_b32 v{vLW}, 4, v0"); e(f"v_xor_b32 v{vLR}, 0x400, v{vLW}")
    e(f"s_lshl_b32 s{sT}, s{sRec}, 10"); e(f"v_add_u32 v{vOut}, s{sT}, v{vt2}")
    for r in range(0, 8, 2): e(f"v_mov_b64 v[{vA+r}:{vA+r+1}], 0")
    e(f"v_mov_b32 v{vmx}, 0xff800000"); e(f"s_mov_b32 s{sCnt}, 8")
    if stamps:
        e(f"v_mov_b32 v{vSt}, 0")
        e(f"s_getreg_b32 s{sT}, hwreg(HW_REG_XCC_ID)"); e(f"s_getreg_b32 s{sT2}, hwreg(HW_REG_HW_ID)")
        e("s_waitcnt lgkmcnt(0)")
        e(f"v_writelane_b32 v{vSt}, s{sT}, 2"); e(f"v_writelane_b32 v{vSt}, s{sT2}, 3")
        e(f"v_writelane_b32 v{vSt}, s{sSt+2}, 0"); e(f"v_writelane_b32 v{vSt}, s{sSt+4}, 1")
    st["C"] = max(0, min(st["C"], LA - max(d1) ))
    def xrow(x, op):
        e(f"v_mov_b32 v{vt}, v{x}")
        e(f"v_permlane32_swap_b32 v{x}, v{vt}"); e(f"{op} v{x}, v{x}, v{vt}")
        e(f"v_mov_b32 v{vt}, v{x}")
        e(f"v_permlane16_swap_b32 v{x}, v{vt}"); e(f"{op} v{x}, v{x}, v{vt}")
    def qk(dst, src): e(f"v_mfma_f32_16x16x32_bf16 v[{dst}:{dst+3}], v[{src}:{src+3}], v[{vQ}:{vQ+3}], 0")
    def rotP(lo, hi):
        for r in range(lo, hi, 2): e(f"v_mov_b64 v[{vP+r}:{vP+r+1}], v[{vP+r+4}:{vP+r+5}]")
    c("---- K phase: 8 iterations x 4 groups x 4 tiles (a tile = 4 positions = one 1 KiB load)")
    if qs: e("s_waitcnt lgkmcnt(0)")
    st["C"] = 0
    if ampx == 3: e("s_waitcnt vmcnt(9)"); e("s_memrealtime s[58:59]")
    if ampx == 4: e("s_waitcnt vmcnt(13)"); e("s_memrealtime s[58:59]")
    if ampx == 5: e("s_waitcnt vmcnt(14)"); e("s_memrealtime s[58:59]")
    if ampx == 6: e("s_waitcnt vmcnt(12)"); e("s_memrealtime s[58:59]")
    lab("L_kloop")
    e(f"s_cmp_eq_u32 s{sCnt}, 1")
    st["kloop"] = True
    for g in range(4):
        gate()
        needdata(4 * g + 3)
        for t in range(4): qk(vD + 4 * t, slot(4 * g + t))
        st["cons"] = 4 * g + 4
        gate()
        rotP(8 * g, min(8 * g + 8, NP - 4))
        for u in range(4):
            for t in range(4):
                if u == 0: e(f"v_mov_b32_dpp v{vT+t}, v{vD+4*t} quad_perm:[0,0,0,0]{DPP}")
                else: e(f"v_add_f32_dpp v{vT+t}, v{vD+4*t+u}, v{vT+t} quad_perm:[{u},{u},{u},{u}]{DPP}")
            if u == 1: gate()
        e(f"v_cndmask_b32 v{vT}, v{vT}, v{vT+1}, s[{sOdd}:{sOdd+1}]")
        e(f"v_cndmask_b32 v{vT+2}, v{vT+2}, v{vT+3}, s[{sOdd}:{sOdd+1}]")
        dst = [vX, vX + 1, vX + 2, vP + NP - 1][g]
        e(f"v_cndmask_b32 v{dst}, v{vT}, v{vT+2}, s[{sHi}:{sHi+1}]")
        if g == 1: e(f"v_max3_f32 v{vmx}, v{vmx}, v{vX}, v{vX+1}")
        if g == 3:
            e(f"v_max3_f32 v{vmx}, v{vmx}, v{vX+2}, v{vP+NP-1}")
            e(f"v_mov_b64 v[{vP+NP-4}:{vP+NP-3}], v[{vX}:{vX+1}]"); e(f"v_mov_b32 v{vP+NP-2}, v{vX+2}")
        gate()
    st["kloop"] = False
    assert st["I"] == 16 + LA, st
    if stamps == 2:
        e(f"s_memrealtime s[{sSt}:{sSt+1}]"); e(f"s_sub_u32 s{sT}, 12, s{sCnt}"); e("s_waitcnt lgkmcnt(0)")
        e(f"s_mov_b32 m0, s{sT}"); e(f"v_writelane_b32 v{vSt}, s{sSt}, m0")
    e(f"s_sub_u32 s{sCnt}, s{sCnt}, 1"); e(f"s_cmp_lg_u32 s{sCnt}, 0"); e("s_cbranch_scc1 L_kloop")
    for k in ("I", "C", "cons"): st[k] += NT - 16
    if dT: st["dd"] = [int(x, 36) for x in str(dT)]
    c("---- true max of this wave's 512 scores per head")
    e(f"v_max_f32_dpp v{vmx}, v{vmx}, v{vmx} quad_perm:[1,0,3,2]{DPP}")
    e(f"v_max_f32_dpp v{vmx}, v{vmx}, v{vmx} quad_perm:[2,3,0,1]{DPP}")
    gate()
    xrow(vmx, "v_max_f32")
    e(f"v_mul_f32 v{vnmc}, s{sNC}, v{vmx}"); e(f"v_min_u32 v{vML}, -2, v{vmx}")
    gate()
    def softp(g):
        for k in (g, g + 1): e(f"v_fma_f32 v{vP+k}, v{vP+k}, s{sC}, v{vnmc}")
        for k in (g, g + 1): e(f"v_exp_f32 v{vP+k}, v{vP+k}")
        if g == 0: e(f"v_mov_b64 v[{vLs}:{vLs+1}], v[{vP}:{vP+1}]")
        else: e(f"v_pk_add_f32 v[{vLs}:{vLs+1}], v[{vLs}:{vLs+1}], v[{vP+g}:{vP+g+1}]")
        for k in (g, g + 1): e(f"v_cvt_pk_bf16_f32 v{vP+k}, v{vP+k}, v{vP+k}")
    softp(0)
    gate()
    def mkx(t, pbase):
        if t < NT:
            X = vX + 2 * (t % 2); k = t % 4
            e(f"v_and_b32_dpp v{X}, v{vP + t//4 - pbase}, v{vM0} quad_perm:[{k},{k},{k},{k}]{DPP}")
            e(f"v_and_b32_dpp v{X+1}, v{vP + t//4 - pbase}, v{vM1} quad_perm:[{k},{k},{k},{k}]{DPP}")
    def vtile(t, pbase, extra=None):
        needdata(NT + t)
        if nofin and t >= nofin:
            st["cons"] = NT + t + 1; gate(); return
        src = slot(NT + t); X = vX + 2 * (t % 2)
        e(f"v_mfma_f32_16x16x16_bf16 v[{vA}:{vA+3}], v[{src}:{src+1}], v[{X}:{X+1}], v[{vA}:{vA+3}]")
        e(f"v_mfma_f32_16x16x16_bf16 v[{vA+4}:{vA+7}], v[{src+2}:{src+3}], v[{X}:{X+1}], v[{vA+4}:{vA+7}]")
        st["cons"] = NT + t + 1
        gate()
        if extra: extra()
        mkx(t + 2, pbase)
    mkx(0, 0); mkx(1, 0)
    c("---- V phase, first 16 tiles: the remaining exponentials ride along")
    def fin_l():
        e(f"v_add_f32 v{vML+1}, v{vLs}, v{vLs+1}")
        e(f"v_add_f32_dpp v{vML+1}, v{vML+1}, v{vML+1} quad_perm:[1,0,3,2]{DPP}")
        e(f"v_add_f32_dpp v{vML+1}, v{vML+1}, v{vML+1} quad_perm:[2,3,0,1]{DPP}")
        xrow(vML + 1, "v_add_f32")
        e(f"v_min_u32 v{vML+1}, -2, v{vML+1}")
        e(f"ds_write_b64 v{vt2}, v[{vML}:{vML+1}] offset:{MLX}")
        e(f"v_mov_b32 v{vnmc}, 0")
    for t in range(16): vtile(t, 0, (lambda t=t: softp(2 * t + 2)) if t < 15 else fin_l)
    rotP(0, NP - 4)
    e(f"s_mov_b32 s{sCnt}, {KV}")
    if dV:
        st["dd"] = [int(x, 36) for x in str(dV)]
    st["C"] = min(st["C"], st["I"] - max(st.get("dd", d1)) + 1)
    LV = st["I"] - st["cons"]; C0 = st["C"] - st["cons"]
    c("---- V phase, steady state")
    lab("L_vloop")
    for t in range(16, 32): vtile(t, 4)
    assert st["I"] - st["cons"] == LV and st["C"] - st["cons"] >= C0
    rotP(0, NP - 8)
    if stamps == 2:
        e(f"s_memrealtime s[{sSt}:{sSt+1}]"); e(f"s_sub_u32 s{sT}, {12+KV}, s{sCnt}"); e("s_waitcnt lgkmcnt(0)")
        e(f"s_mov_b32 m0, s{sT}"); e(f"v_writelane_b32 v{vSt}, s{sSt}, m0")
    e(f"s_sub_u32 s{sCnt}, s{sCnt}, 1"); e(f"s_cmp_lg_u32 s{sCnt}, 0"); e("s_cbranch_scc1 L_vloop")
    for k in ("I", "C", "cons"): st[k] += 16 * (KV - 1)
    c("---- V phase, end: the window opens up to the whole ring")
    st["deep"] = True
    KD = 6 - KV
    if dloop and KD >= 2:
        assert st["I"] - st["cons"] == NSLOT
        e(f"s_mov_b32 s{sCnt}, {KD}")
        st["C"] = st["cons"]
        t0 = 16 * (KV + 1)
        lab("L_dloop")
        for t in range(t0, t0 + 16): vtile(t, 4 * (KV + 1))
        rotP(0, 4 * KD)
        e(f"s_sub_u32 s{sCnt}, s{sCnt}, 1"); e(f"s_cmp_lg_u32 s{sCnt}, 0"); e("s_cbranch_scc1 L_dloop")
        for k in ("I", "C", "cons"): st[k] += 16 * (KD - 1)
        if xch:
            c("the helper published the two waves' merge factors and the hand-off mode long ago (poison until then)")
            lab("L_beta")
            e(f"ds_read_b64 v[{vAL}:{vAL+1}], v{vMW} offset:{BX}")
            e(f"ds_read_b32 v{vt}, v{vnmc} offset:{FLAG}")
            e("s_waitcnt lgkmcnt(0)")
            e(f"v_cmp_eq_u32 vcc, -1, v{vAL}"); e("s_cbranch_vccnz L_beta")
            e(f"v_readfirstlane_b32 s{sFast}, v{vt}")
        for t in range(NT - 16, NT - xch): vtile(t, NP - 4)
    else:
        for t in range(16 * (KV + 1), NT): vtile(t, 4 * (KV + 1))
    assert st["I"] == NTOT
    if xch:
        c("---- last tile; wave w keeps accumulator half w, hands the other half to its partner through LDS")
        src = slot(NTOT - 1); X = vX + 2
        e(f"s_cmp_eq_u32 s{sWave}, 0"); e("s_cbranch_scc1 L_x0")
        for w in (1, 0):
            if w == 0: lab("L_x0")
            keep = vA + 4 * w; send = vA + 4 * (1 - w)
            e(f"s_cmp_eq_u32 s{sFast}, 0")
            e("s_waitcnt vmcnt(0)")
            for a in (send, keep):
                o = src + (2 if a == vA + 4 else 0)
                e(f"v_mfma_f32_16x16x16_bf16 v[{a}:{a+3}], v[{o}:{o+1}], v[{X}:{X+1}], v[{a}:{a+3}]")
            stamp_async(1)
            e(f"ds_write_b128 v{vLW}, v[{send}:{send+3}] offset:{XCH}")
            own = "op_sel_hi:[1,0]" if w == 0 else "op_sel:[0,1] op_sel_hi:[1,1]"
            oth = "op_sel_hi:[1,0,1]" if w == 1 else "op_sel:[0,1,0] op_sel_hi:[1,1,1]"
            for r in (0, 2): e(f"v_pk_mul_f32 v[{keep+r}:{keep+r+1}], v[{keep+r}:{keep+r+1}], v[{vAL}:{vAL+1}] {own}")
            e("s_waitcnt lgkmcnt(0)"); e("s_barrier")
            e(f"ds_read_b128 v[{vD}:{vD+3}], v{vLR} offset:{XCH}")
            stamp_async(2)
            e("s_waitcnt lgkmcnt(0)")
            for r in (0, 2): e(f"v_pk_fma_f32 v[{vD+r}:{vD+r+1}], v[{vD+r}:{vD+r+1}], v[{vAL}:{vAL+1}], v[{keep+r}:{keep+r+1}] {oth}")
            if w == 1:
                e(f"v_cvt_pk_bf16_f32 v{vD}, v{vD}, v{vD+1}"); e(f"v_cvt_pk_bf16_f32 v{vD+1}, v{vD+2}, v{vD+3}")
                e(f"v_min_u32 v{vD}, -2, v{vD}"); e(f"v_min_u32 v{vD+1}, -2, v{vD+1}")
                e("s_cbranch_scc1 L_slowO")
                if nohelp < 2: e(f"global_store_dwordx2 v{vOut}, v[{vD}:{vD+1}], s[20:21]")
                e("s_branch L_sdone" if (stamps or ampx) else "s_endpgm")
    else:
        stamp_async(1)
        c("---- combine the two waves through LDS and publish this workgroup's partial (bf16)")
        e(f"ds_write2st64_b64 v{vLW}, v[{vA}:{vA+1}], v[{vA+2}:{vA+3}] offset0:0 offset1:1")
        e(f"ds_write2st64_b64 v{vLW}, v[{vA+4}:{vA+5}], v[{vA+6}:{vA+7}] offset0:2 offset1:3")
        e("s_waitcnt lgkmcnt(0)"); e("s_barrier")
        e(f"ds_read_b32 v{vt}, v{vnmc} offset:{FLAG}")
        e(f"ds_read_b64 v[{vX}:{vX+1}], v{vMW} offset:{BX}")
        e(f"ds_read2st64_b64 v[{vD}:{vD+3}], v{vLR} offset0:0 offset1:1")
        e(f"ds_read2st64_b64 v[{vD+4}:{vD+7}], v{vLR} offset0:4 offset1:5")
        stamp_async(2)
        e(f"s_waitcnt lgkmcnt({0 if stamps else 1})")
        e(f"v_readfirstlane_b32 s{sT}, v{vt}")
        e(f"v_pk_mul_f32 v[{vD}:{vD+1}], v[{vD}:{vD+1}], v[{vX}:{vX+1}] op_sel_hi:[1,0]")
        e(f"v_pk_mul_f32 v[{vD+2}:{vD+3}], v[{vD+2}:{vD+3}], v[{vX}:{vX+1}] op_sel_hi:[1,0]")
        e("s_waitcnt lgkmcnt(0)")
        e(f"v_pk_fma_f32 v[{vD}:{vD+1}], v[{vD+4}:{vD+5}], v[{vX}:{vX+1}], v[{vD}:{vD+1}] op_sel:[0,1,0] op_sel_hi:[1,1,1]")
        e(f"v_pk_fma_f32 v[{vD+2}:{vD+3}], v[{vD+6}:{vD+7}], v[{vX}:{vX+1}], v[{vD+2}:{vD+3}] op_sel:[0,1,0] op_sel_hi:[1,1,1]")
        e(f"s_cmp_eq_u32 s{sT}, 0")

    e(f"v_cvt_pk_bf16_f32 v{vD}, v{vD}, v{vD+1}"); e(f"v_cvt_pk_bf16_f32 v{vD+1}, v{vD+2}, v{vD+3}")
    e(f"v_min_u32 v{vD}, -2, v{vD}"); e(f"v_min_u32 v{vD+1}, -2, v{vD+1}")
    ost = f"global_store_dwordx2 v{vOut}, v[{vD}:{vD+1}], s[20:21]"
    e("s_cbranch_scc1 L_slowO")
    if nohelp < 2: e(ost)
    lab("L_sdone")
    if ampx:
        e("s_waitcnt lgkmcnt(0)"); e("s_sub_u32 s60, s58, s56"); e("s_mul_i32 s60, s60, 100"); e("s_add_u32 s60, s60, 6000")
        lab("L_ampx")
        e("s_memrealtime s[58:59]"); e("s_waitcnt lgkmcnt(0)"); e("s_sub_u32 s61, s58, s56"); e("s_cmp_lt_u32 s61, s60"); e("s_cbranch_scc1 L_ampx")
    if stamps:
        stamp(58)
        e(f"v_writelane_b32 v{vSt}, s{sSt+2}, 56"); e(f"v_writelane_b32 v{vSt}, s{sSt+4}, 57")
        e("s_branch L_fin")
    else: e("s_endpgm")
    lab("L_slowO")
    e(ost + " sc1")
    e("s_waitcnt vmcnt(0)"); e("s_barrier")
    e("s_branch L_sdone" if stamps else "s_endpgm")

    c("================ helper wave ================")
    lab("L_helper")
    if ic:
        if ic in (2, 3, 4):
            e(f"s_getpc_b64 s[{sT}:{sT+1}]"); lab("L_icb")
            e(f"s_add_u32 s{sT}, s{sT}, L_ic0-L_icb"); e(f"s_addc_u32 s{sT+1}, s{sT+1}, 0")
            e(f"v_and_b32 v{vLane}, 63, v0")
            e(f"v_mad_u64_u32 v[2:3], vcc, v{vLane}, 32, s[{sT}:{sT+1}]")
        e("s_memrealtime s[56:57]"); e("s_waitcnt lgkmcnt(0)")
        if ic in (2, 3, 4): e(f"global_load_dword v{vPF}, v[2:3], off")
        if ic in (3, 4): e("s_waitcnt vmcnt(0)")
        if ic == 3:
            e("s_memrealtime s[56:57]"); e("s_waitcnt lgkmcnt(0)")
        if ic != 4: e("s_branch L_ic0")
        lab("L_icret")
        e("s_memrealtime s[62:63]"); e("s_waitcnt lgkmcnt(0)")
    hP = vR; hKT = vR + 4; hVT = vR + 8; hMask = vR + 12; hTa = vR + 14; hO = vR + 22; hML = vR + 30; hG = vR + 32; hCnt = vR + 34
    vCO, vCM, vOA = vK, vV, vM0
    if hprio: e(f"s_setprio {hprio}")
    e("s_load_dwordx2 s[20:21], s[0:1], 64")
    e(f"v_and_b32 v{vLane}, 63, v0")
    if stamps: e(f"v_mov_b32 v{vSt}, 0")
    e(f"s_mov_b32 s{sC}, {f32(CC)}"); e(f"s_mov_b32 s{sNC}, {f32(-CC)}")
    e(f"s_lshl_b32 s{sT}, s{sRec}, 10"); e(f"v_lshl_add_u32 v{vLW}, v{vLane}, 4, s{sT}")
    e(f"s_lshl_b32 s{sT}, s{sRec}, 5"); e(f"s_add_u32 s{sT}, s{sT}, {MLB}")
    e(f"v_lshl_add_u32 v{vOut}, v{vLane}, 1, s{sT}")
    for r in range(0, 4, 2): e(f"v_mov_b64 v[{hP+r}:{hP+r+1}], -1")
    c("this workgroup reduces output slice c = split: h = c&3, g = (c>>2)&3, w = c>>4; lane = (producer l>>1, which l&1)")
    e(f"s_lshl_b32 s{sT}, s{sKV}, 8")
    e(f"v_and_b32 v{vt2}, 63, v{vC}"); e(f"v_lshl_add_u32 v{vt2}, v{vt2}, 2, s{sT}")
    e(f"v_and_b32 v{vt}, 1, v{vLane}")
    e(f"s_bfe_u32 s{sT2}, s{sSplit}, 0x20002"); e(f"s_lshl_b32 s{sT2}, s{sT2}, 6"); e(f"s_add_u32 s{sT}, s{sT}, s{sT2}")
    e(f"s_lshr_b32 s{sT2}, s{sSplit}, 4"); e(f"s_lshl_b32 s{sT2}, s{sT2}, 3"); e(f"s_add_u32 s{sT}, s{sT}, s{sT2}")
    e(f"v_lshl_add_u32 v{vLR}, v{vt}, 2, s{sT}")
    e(f"v_mov_b32 v{vnmc}, 0")
    e("s_waitcnt lgkmcnt(0)")
    if nohelp:
        e(f"v_mov_b32 v{vX}, 1.0"); e(f"v_mov_b32 v{vX+1}, 1.0"); e(f"v_lshlrev_b32 v{vt2}, 3, v{vLane}")
        e(f"ds_write_b32 v{vnmc}, v{vX} offset:{FLAG}"); e(f"ds_write_b64 v{vt2}, v[{vX}:{vX+1}] offset:{BX}")
        e("s_waitcnt lgkmcnt(0)"); e("s_barrier"); e("s_branch L_fin")
    if late:
        e(f"s_cmp_lg_u32 s{sSplit}, 5"); e("s_cbranch_scc1 L_notlate")
        for _ in range(late): e("s_sleep 127")
        lab("L_notlate")
    if hdelay: e(f"s_sleep {hdelay}")
    c("poison this workgroup's hand-off slots (plain stores: they stay in this XCD's L2)")
    e(f"global_store_dwordx4 v{vLW}, v[{hP}:{hP+3}], s[20:21]")
    e("s_mov_b64 exec, 0x1111")
    e(f"global_store_dwordx2 v{vOut}, v[{hP}:{hP+1}], s[20:21]")
    e("s_mov_b64 exec, -1")
    if amp2:
        e(f"s_cmp_lg_u32 s{sSplit}, 0"); e("s_cbranch_scc1 L_nopub")
        e(f"s_lshl_b32 s{sT}, s{sKV}, 2"); e(f"s_add_u32 s{sT}, s{sT}, 0x2000000"); e(f"v_mov_b32 v{hO}, s{sT}"); e(f"v_mov_b32 v{hO+1}, s56")
        e("s_mov_b64 exec, 1"); e(f"global_store_dword v{hO}, v{hO+1}, s[20:21] sc1"); e("s_mov_b64 exec, -1")
        lab("L_nopub")
    e(f"global_load_dwordx4 v[{vQ}:{vQ+3}], v{vmx}, s[4:5]")
    e(f"global_load_dwordx4 v[{hKT}:{hKT+3}], v{vt2}, s[10:11]")
    for k in range(4): e(f"global_load_dword v{hVT+k}, v{vLR}, s[12:13] offset:{32*(k>>1) + 16*(k&1)}")
    e(f"global_load_ushort v{hMask}, v{vnmc}, s[14:15]")
    e(f"s_and_b32 s{sMT}, s{sSplit}, 3")
    e(f"s_mul_i32 s{sT}, s{sKV}, 768"); e(f"s_lshl_b32 s{sT2}, s{sMT}, 8"); e(f"s_add_u32 s{sT}, s{sT}, s{sT2}"); e(f"v_add_u32 v{vOA}, s{sT}, v{vLR}")
    e(f"v_and_b32 v{vmx}, 48, v{vLane}"); e(f"v_add_u32 v{vOA}, v{vmx}, v{vOA}")
    if 'o' in touch:
        c("translation warm-up for the final store (value unused)")
        e(f"global_load_dword v{vPF}, v{vOA}, s[16:17]")
    if 'v' in touch:
        c("translation warm-up for this workgroup's V region (value unused)")
        e(f"s_lshl_b32 s{sT}, s{sRec}, 18"); e(f"v_mov_b32 v{vmx}, s{sT}"); e(f"global_load_dword v{hCnt}, v{vmx}, s[8:9] nt")
    e(f"v_lshrrev_b32 v{vmx}, 1, v{vLane}")
    e(f"s_lshl_b32 s{sT}, s{sKV}, 10"); e(f"s_lshl_b32 s{sT2}, s{sMT}, 3"); e(f"s_add_u32 s{sT}, s{sT}, s{sT2}"); e(f"s_add_u32 s{sT}, s{sT}, {MLB}")
    e(f"v_lshl_add_u32 v{vCM}, v{vmx}, 5, s{sT}")
    e(f"s_lshl_b32 s{sT}, s{sKV}, 15"); e(f"s_lshl_b32 s{sT2}, s{sMT}, 5"); e(f"s_add_u32 s{sT}, s{sT}, s{sT2}")
    e(f"s_bfe_u32 s{sT2}, s{sSplit}, 0x20002"); e(f"s_lshl_b32 s{sT2}, s{sT2}, 7"); e(f"s_add_u32 s{sT}, s{sT}, s{sT2}")
    e(f"s_lshr_b32 s{sT2}, s{sSplit}, 4"); e(f"s_lshl_b32 s{sT2}, s{sT2}, 9"); e(f"s_add_u32 s{sT}, s{sT}, s{sT2}")
    e(f"v_lshl_add_u32 v{vCO}, v{vmx}, 10, s{sT}"); e(f"v_lshl_add_u32 v{vCO}, v{vt}, 4, v{vCO}")
    c("arm: once the poison is in L2, d_debug byte [kv*32+split] = 0x80 | XCC id (plain store)")
    e(f"s_getreg_b32 s{sInc}, hwreg(HW_REG_XCC_ID, 0, 4)")
    e(f"s_or_b32 s{sInc}, s{sInc}, 0x80")
    e(f"s_lshl_b32 s{sT}, s{sKV}, 5")
    e(f"v_mov_b32 v{vt}, s{sRec}"); e(f"v_mov_b32 v{vt2}, s{sInc}")
    e(f"v_and_b32 v{vMW}, 7, v{vLane}"); e(f"v_lshl_add_u32 v{vMW}, v{vMW}, 2, s{sT}")
    e(f"s_mul_i32 s{sInc}, s{sInc}, 0x01010101"); e(f"s_lshl_b32 s{sMT}, s{sMT}, 2")
    e("s_waitcnt vmcnt(0)")
    e("s_mov_b64 exec, 1")
    e(f"global_store_byte v{vt}, v{vt2}, s[18:19]")
    e("s_mov_b64 exec, -1")
    c("tree token: raw score q.k_tree + (1-mask)*(-1e9/scale) and its v_tree slice (lanes 0,1 only)")
    qk(vD, hKT)
    e(f"v_lshlrev_b32 v{hMask}, 16, v{hMask}"); e(f"v_sub_f32 v{hMask}, 1.0, v{hMask}"); e(f"s_mov_b32 s{sT}, {f32(BIG)}")
    e(f"v_cmp_gt_u32 vcc, 2, v{vLane}")
    for k in range(8):
        if k & 4: e(f"v_and_b32 v{hTa+k}, 0xffff0000, v{hVT + (k & 3)}")
        else: e(f"v_lshlrev_b32 v{hTa+k}, 16, v{hVT + (k & 3)}")
    for k in range(8): e(f"v_cndmask_b32 v{hTa+k}, 0, v{hTa+k}, vcc")
    e(f"v_mov_b32_dpp v{vT}, v{vD} quad_perm:[0,0,0,0]{DPP}")
    for u in range(1, 4): e(f"v_add_f32_dpp v{vT}, v{vD+u}, v{vT} quad_perm:[{u},{u},{u},{u}]{DPP}")
    e(f"v_fma_f32 v{vT}, v{hMask}, s{sT}, v{vT}")
    e(f"v_readlane_b32 s{sMT}, v{vT}, s{sMT}")
    e(f"v_lshlrev_b32 v{vt2}, 3, v{vLane}")
    e(f"s_mov_b32 s{sCnt}, {spin}")
    def mlread(): e(f"ds_read2st64_b64 v[{vD}:{vD+3}], v{vt2} offset0:{MLX//512} offset1:{MLX//512+1}")
    def mlcheck():
        e(f"v_max3_u32 v{vt}, v{vD}, v{vD+1}, v{vD+2}"); e(f"v_max_u32 v{vt}, v{vt}, v{vD+3}")
        e(f"v_cmp_eq_u32 vcc, -1, v{vt}")
    c("FAST iff all 32 workgroups of this head have armed on this XCD; still open when our (m,l) are ready -> SLOW")
    lab("L_armchk")
    e(f"s_sleep {asleep}")
    e(f"global_load_dword v{hCnt}, v{vMW}, s[18:19] sc1")
    mlread()
    e(f"s_mov_b32 s{sFast}, {0 if force == 'slow' else 1}")
    e("s_waitcnt vmcnt(0) lgkmcnt(0)")
    e(f"v_and_b32 v{hCnt}, 0xbfbfbfbf, v{hCnt}"); e(f"v_cmp_ne_u32 vcc, s{sInc}, v{hCnt}")
    e("s_cbranch_vccz L_armed")
    mlcheck()
    e("s_cbranch_vccnz L_armchk")
    e(f"s_mov_b32 s{sFast}, 0")
    lab("L_armed")
    e(f"v_mov_b32 v{vt}, s{sFast}"); e(f"ds_write_b32 v{vnmc}, v{vt} offset:{FLAG}")
    c("wait for the streaming waves' (m,l), merge them, publish (M,L)")
    lab("L_ldspoll")
    e(f"s_sleep {lsleep}")
    mlread()
    e("s_waitcnt lgkmcnt(0)")
    mlcheck()
    e("s_cbranch_vccnz L_ldspoll")
    e(f"v_max_f32 v{vML}, v{vD}, v{vD+2}")
    e(f"v_mul_f32 v{vnmc}, s{sNC}, v{vML}")
    for j in range(2): e(f"v_fma_f32 v{vX+j}, v{vD+2*j}, s{sC}, v{vnmc}")
    for j in range(2): e(f"v_exp_f32 v{vX+j}, v{vX+j}")
    e(f"s_cmp_eq_u32 s{sFast}, 0")
    e(f"v_mul_f32 v{vML+1}, v{vX}, v{vD+1}")
    e(f"v_fma_f32 v{vML+1}, v{vX+1}, v{vD+3}, v{vML+1}")
    if xch: e(f"v_min_u32 v{vX}, -2, v{vX}")
    e(f"ds_write_b64 v{vt2}, v[{vX}:{vX+1}] offset:{BX}")
    e(f"v_min_u32 v{vML+1}, -2, v{vML+1}")
    e("s_mov_b64 exec, 0x1111")
    e("s_cbranch_scc1 L_slowM")
    e(f"global_store_dwordx2 v{vOut}, v[{vML}:{vML+1}], s[20:21]")
    lab("L_mgo")
    e("s_mov_b64 exec, -1")
    c("gather the 32 (M,L) of this head and turn them into final weights")
    lab("L_pollM")
    e(f"s_sleep {msleep}")
    e(f"global_load_dwordx2 v[{hML}:{hML+1}], v{vCM}, s[20:21] sc1")
    e(f"s_sub_u32 s{sCnt}, s{sCnt}, 1"); e("s_cbranch_scc1 L_mto")
    e("s_waitcnt vmcnt(0)")
    e(f"v_max_u32 v{vmx}, v{hML}, v{hML+1}"); e(f"v_cmp_eq_u32 vcc, -1, v{vmx}")
    e("s_cbranch_vccnz L_pollM")
    lab("L_mto")
    stamp_async(1)
    e(f"v_max_f32 v{vmx}, s{sMT}, v{hML}")
    xrow(vmx, "v_max_f32")
    for ctl in ("row_ror:8", "row_ror:4", "quad_perm:[2,3,0,1]"): e(f"v_max_f32_dpp v{vmx}, v{vmx}, v{vmx} {ctl}{DPP}")
    e(f"v_sub_f32 v{hG}, v{hML}, v{vmx}"); e(f"v_sub_f32 v{vAL}, s{sMT}, v{vmx}")
    e(f"v_mul_f32 v{hG}, s{sC}, v{hG}"); e(f"v_mul_f32 v{vAL}, s{sC}, v{vAL}")
    e(f"v_exp_f32 v{hG}, v{hG}"); e(f"v_exp_f32 v{vAL}, v{vAL}")
    e(f"v_mul_f32 v{vmx}, v{hG}, v{hML+1}")
    xrow(vmx, "v_add_f32")
    for ctl in ("row_ror:8", "row_ror:4", "quad_perm:[2,3,0,1]"): e(f"v_add_f32_dpp v{vmx}, v{vmx}, v{vmx} {ctl}{DPP}")
    e(f"v_add_f32 v{vmx}, v{vmx}, v{vAL}"); e(f"v_rcp_f32 v{vmx}, v{vmx}")
    e(f"v_mul_f32 v{hG}, v{hG}, v{vmx}"); e(f"v_mul_f32 v{vAL}, v{vAL}, v{vmx}")
    for r in range(0, 8, 2): e(f"v_pk_mul_f32 v[{hTa+r}:{hTa+r+1}], v[{hTa+r}:{hTa+r+1}], v[{vAL}:{vAL+1}] op_sel_hi:[1,0]")
    e(f"s_mov_b32 s{sCnt}, {spin}")
    e(f"s_mov_b32 s{sOdd}, 0x00030003"); e(f"s_mov_b32 s{sOdd+1}, 0x00030003")
    e(f"s_cmp_eq_u32 s{sFast}, 0"); e("s_cbranch_scc1 L_pollO")
    e("s_waitcnt lgkmcnt(0)"); e("s_barrier")
    if nopoll: e("s_branch L_fin")
    def oload(): e(f"global_load_dwordx4 v[{hO}:{hO+3}], v{vCO}, s[20:21] sc1")
    def ocheck():
        e(f"v_max3_u32 v{vt}, v{hO}, v{hO+1}, v{hO+2}"); e(f"v_max_u32 v{vt}, v{vt}, v{hO+3}")
        e(f"v_cmp_eq_u32 vcc, -1, v{vt}")
    c("gather the partials: only lanes still holding poison keep loading; the last few are polled back to back")
    lab("L_pollO")
    oload()
    if osleep: e(f"s_sleep {osleep}")
    e(f"s_sub_u32 s{sCnt}, s{sCnt}, 1"); e("s_cbranch_scc1 L_fin")
    e("s_waitcnt vmcnt(0)")
    ocheck()
    e(f"s_bcnt1_i32_b64 s{sT2}, vcc"); e("s_cbranch_scc0 L_done")
    e("s_mov_b64 exec, vcc")
    e(f"s_cmp_gt_u32 s{sT2}, {thr}"); e("s_cbranch_scc1 L_pollO")
    lab("L_pollO2")
    oload()
    e(f"s_sub_u32 s{sCnt}, s{sCnt}, 1"); e("s_cbranch_scc1 L_fin")
    e(f"s_waitcnt vmcnt({pdepth-1})")
    ocheck()
    e("s_and_b64 exec, exec, vcc"); e("s_cbranch_scc1 L_pollO2")
    lab("L_done")
    if amph == 2: e("s_memrealtime s[56:57]")
    e("s_mov_b64 exec, -1")
    stamp_async(2)
    R_ = hTa; U_ = vD
    for k in range(4):
        e(f"v_lshlrev_b32 v{U_+2*k}, 16, v{hO+k}"); e(f"v_and_b32 v{U_+2*k+1}, 0xffff0000, v{hO+k}")
    for r in range(0, 8, 2): e(f"v_pk_fma_f32 v[{R_+r}:{R_+r+1}], v[{U_+r}:{U_+r+1}], v[{hG}:{hG+1}], v[{hTa+r}:{hTa+r+1}] op_sel_hi:[1,0,1]")
    for r in (0, 1, 4, 5): e(f"v_permlane32_swap_b32 v{R_+r}, v{R_+r+2}")
    for r in (0, 4): e(f"v_pk_add_f32 v[{R_+r}:{R_+r+1}], v[{R_+r}:{R_+r+1}], v[{R_+r+2}:{R_+r+3}]")
    e(f"v_permlane16_swap_b32 v{R_}, v{R_+1}"); e(f"v_permlane16_swap_b32 v{R_+4}, v{R_+5}")
    e(f"v_add_f32 v{R_}, v{R_}, v{R_+1}"); e(f"v_add_f32 v{R_+4}, v{R_+4}, v{R_+5}")
    for ctl in ("row_ror:8", "row_ror:4", "quad_perm:[2,3,0,1]"):
        for x in (R_, R_ + 4): e(f"v_add_f32_dpp v{x}, v{x}, v{x} {ctl}{DPP}")
    e(f"s_mov_b64 exec, s[{sOdd}:{sOdd+1}]")
    e(f"v_cvt_pk_bf16_f32 v{R_}, v{R_}, v{R_+4}")
    if amph == 1: e("s_memrealtime s[56:57]")
    e(f"global_store_dword v{vOA}, v{R_}, s[16:17]")
    if amph:
        e("s_waitcnt vmcnt(0)"); e("s_memrealtime s[62:63]"); e("s_waitcnt lgkmcnt(0)")
        e("s_sub_u32 s60, s62, s56"); e("s_mul_i32 s60, s60, 100"); e("s_add_u32 s60, s60, 4000")
        lab("L_amph")
        e("s_memrealtime s[58:59]"); e("s_waitcnt lgkmcnt(0)"); e("s_sub_u32 s61, s58, s56"); e("s_cmp_lt_u32 s61, s60"); e("s_cbranch_scc1 L_amph")
    if stamps:
        e("s_mov_b64 exec, -1")
        stamp(61); e("s_waitcnt vmcnt(0)"); stamp(62)
        e(f"v_writelane_b32 v{vSt}, s{sSt+2}, 59"); e(f"v_writelane_b32 v{vSt}, s{sSt+4}, 60")
    lab("L_fin")
    if ic:
        e("s_sub_u32 s60, s62, s56"); e("s_mul_i32 s60, s60, 100"); e("s_add_u32 s60, s60, 6000")
        lab("L_icamp")
        e("s_memrealtime s[58:59]"); e("s_waitcnt lgkmcnt(0)"); e("s_sub_u32 s61, s58, s56"); e("s_cmp_lt_u32 s61, s60"); e("s_cbranch_scc1 L_icamp")
    if amp:
        e("s_waitcnt vmcnt(0)"); e("s_memrealtime s[58:59]"); e("s_waitcnt lgkmcnt(0)")
        if amp2:
            e("s_mov_b64 exec, -1")
            e(f"v_and_b32 v{vt}, 7, v{vLane}"); e(f"v_lshlrev_b32 v{vt}, 2, v{vt}"); e(f"v_add_u32 v{vt}, 0x2000000, v{vt}")
            e(f"global_load_dword v{vt}, v{vt}, s[20:21] sc1"); e("s_waitcnt vmcnt(0)")
            e(f"v_sub_u32 v{vt}, s58, v{vt}")
            for k in range(8):
                e(f"v_readlane_b32 s61, v{vt}, {k}"); e("s_nop 1")
                e("s_mov_b32 s60, s61" if k == 0 else "s_max_u32 s60, s60, s61")
            e("s_min_u32 s60, s60, 4000"); e("s_sub_u32 s56, s58, s60")
        e("s_sub_u32 s60, s58, s56"); e(f"s_mul_i32 s60, s60, {amp}"); e("s_add_u32 s60, s60, 6000")
        lab("L_amp")
        e("s_memrealtime s[58:59]"); e("s_waitcnt lgkmcnt(0)"); e("s_sub_u32 s61, s58, s56"); e("s_cmp_lt_u32 s61, s60"); e("s_cbranch_scc1 L_amp")
    if stamps:
        e("s_mov_b64 exec, -1")
        e(f"s_mul_i32 s{sT}, s2, {(W+1)*64}"); e(f"s_add_u32 s{sT}, s{sT}, s{sWave}"); e(f"s_lshl_b32 s{sT}, s{sT}, 2")
        e("s_add_u32 s20, s20, 0x8000000"); e("s_addc_u32 s21, s21, 0")
        e(f"v_lshl_add_u32 v{vt}, v{vLane}, 2, s{sT}")
        e(f"global_store_dword v{vt}, v{vSt}, s[20:21]")
    lab("L_end")
    e("s_endpgm")
    c("SLOW: everything is written through; bit 6 of our d_debug byte (memory-side atomic) says so; wait for all 32")
    lab("L_slowM")
    e(f"global_store_dwordx2 v{vOut}, v[{vML}:{vML+1}], s[20:21] sc1")
    e("s_mov_b64 exec, -1")
    e("s_waitcnt lgkmcnt(0)"); e("s_barrier")
    e(f"s_and_b32 s{sT}, s{sRec}, 0xfc")
    e(f"s_and_b32 s{sT2}, s{sSplit}, 3"); e(f"s_lshl_b32 s{sT2}, s{sT2}, 3"); e(f"s_lshl_b32 s{sT2}, 0x40, s{sT2}")
    e(f"v_mov_b32 v{vt}, s{sT}"); e(f"v_mov_b32 v{vt2}, s{sT2}"); e(f"v_mov_b32 v{vnmc}, 0")
    e("s_waitcnt vmcnt(0)"); e("s_barrier")
    e("s_mov_b64 exec, 1")
    e(f"global_atomic_or v{vt}, v{vt2}, s[18:19]")
    lab("L_slowwait")
    e("s_mov_b64 exec, 0xff")
    e(f"global_atomic_or v{vmx}, v{vMW}, v{vnmc}, s[18:19] sc0")
    e(f"global_load_dword v{hCnt}, v{vMW}, s[18:19] sc1")
    e("s_waitcnt vmcnt(0)")
    e(f"v_and_b32 v{vmx}, 0x40404040, v{vmx}"); e(f"v_cmp_ne_u32 vcc, 0x40404040, v{vmx}")
    e("s_cbranch_vccz L_mgo")
    if force != 'slow':
        e(f"v_and_b32 v{hCnt}, 0xbfbfbfbf, v{hCnt}"); e(f"v_cmp_ne_u32 vcc, s{sInc}, v{hCnt}")
        e("s_cbranch_vccz L_mgo")
    e("s_sleep 32")
    e(f"s_sub_u32 s{sCnt}, s{sCnt}, 1"); e("s_cbranch_scc0 L_slowwait")
    e("s_branch L_fin")
    if ic:
        L.append(".p2align 8")
        for k in range(icn):
            lab(f"L_ic{k}")
            e(f"s_branch L_ic{k+1}" if k + 1 < icn else "s_branch L_icret")
            L.append(f".fill {icgap//4 - 1}, 4, 0xbf800000")
        L.append(f".fill {(2048 - icn*icgap)//4 if icn*icgap < 2048 else 0}, 4, 0xbf800000")
        e("s_endpgm")
    lab("L_codeend")
    L.append('.section .rodata,"a"'); L.append(".p2align 6"); L.append(f".amdhsa_kernel {KN}_kernel")
    L.append(f"  .amdhsa_next_free_vgpr {nv}"); L.append("  .amdhsa_next_free_sgpr 64"); L.append(f"  .amdhsa_accum_offset {(nv+3)//4*4}")
    L.append("  .amdhsa_group_segment_fixed_size 0"); L.append("  .amdhsa_kernarg_size 72"); L.append("  .amdhsa_user_sgpr_count 2")
    L.append("  .amdhsa_user_sgpr_kernarg_segment_ptr 1"); L.append("  .amdhsa_system_sgpr_workgroup_id_x 1"); L.append(".end_amdhsa_kernel")
    s = "\n".join(L) + "\n"
    s, n = hazard.fix(s)
    pr = hazard.check_branches(s)
    assert not pr, pr
    if pf:
        import subprocess, re
        open("_sz.s", "w").write(s)
        subprocess.run(["clang", "-x", "assembler", "-target", "amdgcn-amd-amdhsa", "-mcpu=gfx950", "-c", "_sz.s", "-o", "_sz.o"], check=True)
        out = subprocess.run(["llvm-readelf", "-S", "_sz.o"], capture_output=True, text=True).stdout
        size = int(re.search(r"\.text\s+PROGBITS\s+\S+\s+\S+\s+(\S+)", out).group(1), 16)
        assert 32 + 191 * pf + 4 <= size, (size, pf)
    return s
DOC = """;
;
;       O[h][32g + 8r + e (+4)].
;
;"""
if __name__ == "__main__":
    name = sys.argv[1]; kw = {}
    for a in sys.argv[2:]:
        k, v = a.split("=", 1)
        if k not in ("d1", "dT", "dV"):
            try: v = int(v)
            except ValueError: pass
        if k == "ldflags": v = v.replace("+", " ").replace("none", "")
        kw[k] = v
    open(name if "/" in name else f"build/{name}.s", "w").write(gen(**kw))
```
